```python
import torch

def _softmax(x, axis=-1):
    return torch.softmax(x, dim=axis)
def _gelu(x):
    return torch.nn.functional.gelu(x, approximate="tanh")
def _silu(x):
    return torch.nn.functional.silu(x)
def _sigmoid(x):
    return torch.sigmoid(x)
def _layernorm(x, axis=-1, eps=1e-5):
    m = x.mean(dim=axis, keepdim=True)
    v = x.var(dim=axis, keepdim=True, unbiased=False)
    return (x - m) / torch.sqrt(v + eps)
def _scatter_add(tgt, idx, src, axis=0):
    return tgt.clone().index_add_(axis, idx, src)
def _segment_sum(src, seg, n):
    out = torch.zeros((n,) + src.shape[1:], dtype=src.dtype)
    return out.index_add_(0, seg, src)
def _pad(x, pw):
    flat = tuple(v for pair in reversed(pw) for v in pair)
    return torch.nn.functional.pad(x, flat)

kernel_name = 'gather_scatter__edge_featured_mpnn_mpnn__graph'

def setup_inputs():

    _w = (lambda a: (lambda t: t.to(torch.bfloat16) if t.is_floating_point() else t)(torch.as_tensor(a)))
    N, deg, D, De = 25000, 16, 128, max(16, 1)
    E = N * deg
    H = 2 * D
    return {
        "x": _w((lambda *s: torch.randn(*s, dtype=torch.bfloat16) * 0.05)(N, D)),
        "e_attr": _w((lambda *s: torch.randn(*s, dtype=torch.bfloat16) * 0.8)(E, De)),
        "src": _w((lambda lo, hi, *s: torch.randint(lo, hi, s))(0, N, E).to(torch.int64)),
        "dst": _w((lambda lo, hi, *s: torch.randint(lo, hi, s))(0, N, E).to(torch.int64)),
        "w1": _w((lambda *s: torch.randn(*s, dtype=torch.bfloat16) * 0.8)(2 * D + De, H) * (1.0 / (2 * D + De) ** 0.5)),
        "b1": _w((lambda *s: torch.randn(*s, dtype=torch.bfloat16) * 0.4)(H) * 0.01),
        "w2": _w((lambda *s: torch.randn(*s, dtype=torch.bfloat16) * 0.05)(H, D) * (1.0 / H ** 0.5)),
        "b2": _w((lambda *s: torch.randn(*s, dtype=torch.bfloat16) * 0.05)(D) * 0.01),
    }

def reference(x, e_attr, src, dst, w1, b1, w2, b2):
    N, D = x.shape
    h_src = x[src]
    h_dst = x[dst]
    m_in = torch.concatenate([h_src, h_dst, e_attr], axis=-1)
    h = _silu(m_in @ w1 + b1)
    msg = h @ w2 + b2
    return _segment_sum(msg, dst, N)
```

```python
import struct
N=25000; E=400000; D=128; H=256
NPW=98; NWG=256; CH=1564
KNAME="gather_scatter__edge_featured_mpnn_mpnn__graph"
WS_ATAB=0
WS_REC=0xD00000
WS_CS=0x1100000
WS_W1BF=0x1180000
WS_WCF=0x1190000
WS_W2F=0x11A0000
WS_LUT=0x11C0000
WS_END=0x1200000
def f2u(f): return struct.unpack("<I",struct.pack("<f",f))[0]
SCALE=-1.4426950408889634
ISCALE=-0.6931471805599453

class Asm:
    def __init__(self): self.l=[]
    def __call__(self,s):
        for x in s.split("\n"):
            x=x.strip()
            if x: self.l.append(x if x.endswith(":") else "  "+x)
    def label(self,n): self.l.append(n+":")
    def nop(self,n=1):
        while n>0:
            k=min(n,16); self.l.append(f"  s_nop {k-1}"); n-=k
    def text(self): return "\n".join(self.l)
def vr(a,n=1): return f"v{a}" if n==1 else f"v[{a}:{a+n-1}]"
def sr(a,n=1): return f"s{a}" if n==1 else f"s[{a}:{a+n-1}]"

def srd(A,s,base_lo,base_hi,size,add=0):
    if add:
        A(f"s_add_u32 s{s}, s{base_lo}, {add:#x}")
        A(f"s_addc_u32 s{s+1}, s{base_hi}, 0")
    else:
        A(f"s_mov_b32 s{s}, s{base_lo}")
        A(f"s_mov_b32 s{s+1}, s{base_hi}")
    A(f"s_mov_b32 s{s+2}, {size:#x}")
    A(f"s_mov_b32 s{s+3}, 0x00020000")

def kd(name,vgpr,sgpr):
    return f""".p2align 6
.amdhsa_kernel {name}
  .amdhsa_next_free_vgpr {vgpr}
  .amdhsa_next_free_sgpr {sgpr}
  .amdhsa_accum_offset {(vgpr+3)//4*4}
  .amdhsa_group_segment_fixed_size 0
  .amdhsa_kernarg_size 88
  .amdhsa_user_sgpr_count 2
  .amdhsa_user_sgpr_kernarg_segment_ptr 1
  .amdhsa_system_sgpr_workgroup_id_x 1
  .amdhsa_float_denorm_mode_32 3
.end_amdhsa_kernel"""
```

```python
from common import *
K1_LDS=64*1024+32*1024+2048
def gen_k1():
    A=Asm()
    name="prep_kernel"
    A(f".globl {name}\n.p2align 8\n.type {name},@function")
    A.label(name)
    HIST=0; PRE=1024; XL=2048; WL=2048+32768
    sX=8; sSRC=12; sDST=16; sW1=20; sW2=24; sWS=28
    sWG=2; sWAVE=3
    A("s_cmp_ge_u32 s2, 256")
    A("s_cbranch_scc1 K1_END")
    A("s_load_dwordx2 s[32:33], s[0:1], 0")
    A("s_load_dwordx4 s[36:39], s[0:1], 16")
    A("s_load_dwordx2 s[40:41], s[0:1], 32")
    A("s_load_dwordx2 s[42:43], s[0:1], 48")
    A("s_load_dwordx2 s[44:45], s[0:1], 80")
    A("v_and_b32 v1, 63, v0")
    A("v_lshrrev_b32 v2, 6, v0")
    A.nop(1)
    A("v_readfirstlane_b32 s3, v2")
    A("s_waitcnt lgkmcnt(0)")
    srd(A,sX,32,33,N*256)
    srd(A,sSRC,36,37,E*4)
    srd(A,sDST,38,39,E*4)
    srd(A,sW1,40,41,272*512)
    srd(A,sW2,42,43,256*256)
    srd(A,sWS,44,45,WS_END)
    A(f"s_mul_i32 s46, s2, {CH*4}")
    A("v_lshlrev_b32 v3, 4, v0")
    A("v_add_u32 v3, s46, v3")
    A(f"buffer_load_dwordx4 v[4:7], v3, s[{sDST}:{sDST+3}], 0 offen")
    A(f"buffer_load_dwordx4 v[8:11], v3, s[{sSRC}:{sSRC+3}], 0 offen")
    A("v_lshrrev_b32 v12, 4, v1")
    A("v_and_b32 v13, 15, v1")
    A("v_xor_b32 v13, v13, v12")
    A("v_lshlrev_b32 v13, 4, v13")
    A(f"s_mul_i32 s47, s2, {NPW}")
    A("s_lshl_b32 s48, s3, 4")
    A("s_add_u32 s48, s48, s47")
    A("v_add_u32 v14, s48, v12")
    A("v_lshlrev_b32 v14, 8, v14")
    A("s_lshl_b32 s49, s3, 12")
    A(f"s_add_u32 s49, s49, {XL}")
    for i in range(4):
        A(f"v_xor_b32 v15, {64*i}, v13")
        A("v_add_u32 v15, v14, v15")
        A(f"s_mov_b32 s50, {i*1024}")
        A(f"s_add_u32 m0, s49, {i*1024}")
        A.nop(1)
        A(f"buffer_load_dwordx4 v15, s[{sX}:{sX+3}], s50 offen lds")
    A("v_lshlrev_b32 v16, 4, v1")
    A("s_lshl_b32 s51, s3, 13")
    for i in range(8):
        A(f"s_add_u32 s50, s51, {i*1024}")
        A(f"s_add_u32 m0, s50, {WL}")
        A.nop(1)
        A(f"buffer_load_dwordx4 v16, s[{sW1}:{sW1+3}], s50 offen lds")
    A("v_lshlrev_b32 v17, 2, v0")
    A("v_mov_b32 v18, 0")
    A("v_cmp_gt_u32 vcc, 256, v0")
    A("s_and_saveexec_b64 s[52:53], vcc")
    A(f"ds_write_b32 v17, v18 offset:{HIST}")
    A("s_mov_b64 exec, s[52:53]")
    A("s_waitcnt lgkmcnt(0)")
    A("s_barrier")
    A(f"s_mul_i32 s54, s2, {CH}")
    A(f"s_sub_u32 s55, {E}, s54")
    A(f"s_min_u32 s55, s55, {CH}")
    A("v_lshlrev_b32 v19, 2, v0")
    A("s_waitcnt vmcnt(12)")
    A("v_cmp_gt_u32 vcc, s55, v19")
    A("s_and_saveexec_b64 s[56:57], vcc")
    A("s_mov_b64 s[58:59], exec")
    A("s_cbranch_execz K1_A")
    A("s_mov_b32 s60, 42800")
    A("v_mov_b32 v24, 1")
    for k in range(4):
        A(f"v_mul_u32_u24 v{20+k}, s60, v{4+k}")
        A(f"v_lshrrev_b32 v{20+k}, 22, v{20+k}")
        A(f"v_lshlrev_b32 v25, 2, v{20+k}")
        A(f"ds_add_rtn_u32 v{28+k}, v25, v24 offset:{HIST}")
    A.label("K1_A")
    A("s_mov_b64 exec, s[56:57]")
    A("s_waitcnt lgkmcnt(0)")
    A("s_barrier")
    A("s_cmp_lg_u32 s3, 0")
    A("s_cbranch_scc1 K1_B")
    A("v_lshlrev_b32 v32, 4, v1")
    A(f"ds_read_b128 v[36:39], v32 offset:{HIST}")
    A("s_waitcnt lgkmcnt(0)")
    A("v_add_u32 v40, v36, v37")
    A("v_add_u32 v41, v40, v38")
    A("v_add_u32 v42, v41, v39")
    A("v_mov_b32 v43, v42")
    for sh in (1,2,4,8):
        A.nop(2)
        A(f"v_add_u32_dpp v43, v43, v43 row_shr:{sh} row_mask:0xf bank_mask:0xf bound_ctrl:0")
    A.nop(2)
    A("v_add_u32_dpp v43, v43, v43 row_bcast:15 row_mask:0xa bank_mask:0xf")
    A.nop(2)
    A("v_add_u32_dpp v43, v43, v43 row_bcast:31 row_mask:0xc bank_mask:0xf")
    A("v_sub_u32 v44, v43, v42")
    A("v_add_u32 v45, v44, v36")
    A("v_add_u32 v46, v44, v40")
    A("v_add_u32 v47, v44, v41")
    A(f"ds_write_b128 v32, v[44:47] offset:{PRE}")
    A("v_lshlrev_b32 v33, 12, v1")
    A("s_lshl_b32 s61, s2, 2")
    A(f"s_add_u32 s61, s61, {WS_CS:#x}")
    for k in range(4):
        A(f"v_lshlrev_b32 v34, 16, v{36+k}")
        A(f"v_or_b32 v34, v34, v{44+k}")
        A(f"buffer_store_dword v34, v33, s[{sWS}:{sWS+3}], s61 offen offset:{k*1024}")
        A.nop(1)
    A.label("K1_B")
    A("s_waitcnt vmcnt(0) lgkmcnt(0)")
    A("s_barrier")
    A("s_mov_b64 exec, s[58:59]")
    A("s_cbranch_execz K1_C")
    for k in range(4):
        A(f"v_lshlrev_b32 v25, 2, v{20+k}")
        A(f"ds_read_b32 v{32+k}, v25 offset:{PRE}")
    A(f"s_mul_i32 s62, s2, {CH*8}")
    A(f"s_add_u32 s62, s62, {WS_REC:#x}")
    A("s_waitcnt lgkmcnt(0)")
    for k in range(4):
        A(f"v_add_u32 v{32+k}, v{32+k}, v{28+k}")
        A(f"v_lshlrev_b32 v{32+k}, 3, v{32+k}")
        A(f"v_mul_u32_u24 v36, {NPW}, v{20+k}")
        A(f"v_sub_u32 v36, v{4+k}, v36")
        A(f"v_lshlrev_b32 v36, 16, v36")
        A(f"v_or_b32 v{38+2*k}, v36, v{8+k}")
        A(f"v_add_u32 v{39+2*k}, s54, v19")
        A(f"v_add_u32 v{39+2*k}, {k}, v{39+2*k}")
        A(f"buffer_store_dwordx2 v[{38+2*k}:{39+2*k}], v{32+k}, s[{sWS}:{sWS+3}], s62 offen")
    A.label("K1_C")
    A("s_mov_b64 exec, s[56:57]")
    Wf=64
    A("v_lshrrev_b32 v50, 5, v1")
    A("v_lshrrev_b32 v51, 2, v1")
    A("v_and_b32 v51, 3, v51")
    A("v_lshl_add_u32 v52, v50, 3, v51")
    A("v_lshlrev_b32 v52, 9, v52")
    A("v_lshrrev_b32 v53, 4, v1")
    A("v_and_b32 v53, 1, v53")
    A("v_lshlrev_b32 v53, 5, v53")
    A("v_and_b32 v54, 3, v1")
    A("v_lshlrev_b32 v54, 3, v54")
    A("v_add3_u32 v52, v52, v53, v54")
    A("s_lshl_b32 s63, s3, 6")
    A("v_add_u32 v52, s63, v52")
    A(f"v_add_u32 v52, {WL}, v52")
    for s in range(8):
        for jj in range(2):
            A(f"ds_read_b64_tr_b16 v[{Wf+4*s+2*jj}:{Wf+4*s+2*jj+1}], v52 offset:{s*8192+jj*2048}")
        if s%4==3: A("s_waitcnt lgkmcnt(0)")
    A("v_and_b32 v55, 31, v1")
    A("v_and_b32 v56, 15, v1")
    A("v_xor_b32 v56, v56, v50")
    A("v_lshlrev_b32 v56, 4, v56")
    A("v_lshlrev_b32 v57, 8, v55")
    A(f"v_add_u32 v57, {XL}, v57")
    for s in range(8):
        A(f"v_xor_b32 v{100+s}, {32*s}, v56")
        A(f"v_add_u32 v{100+s}, v{100+s}, v57")
    A("v_add_u32 v58, s47, v55")
    A("v_lshlrev_b32 v59, 9, v58")
    A("v_lshlrev_b32 v60, 5, v50")
    A("v_add_u32 v59, v59, v60")
    A("v_add_u32 v59, s63, v59")
    A(f"s_add_u32 s64, s47, {NPW}")
    A(f"s_min_u32 s64, s64, {N}")
    A(f"s_mov_b32 s65, {f2u(SCALE):#x}")
    Xo=112; acc=144
    for nt in range(4):
        for s in range(8):
            A(f"ds_read_b128 v[{Xo+4*s}:{Xo+4*s+3}], v{100+s} offset:{nt*8192}")
        for s in range(8):
            A(f"s_waitcnt lgkmcnt({7-s})")
            c = "0" if s==0 else f"v[{acc}:{acc+15}]"
            A(f"v_mfma_f32_32x32x16_bf16 v[{acc}:{acc+15}], v[{Wf+4*s}:{Wf+4*s+3}], v[{Xo+4*s}:{Xo+4*s+3}], {c}")
        A.nop(16)
        for r in range(16):
            A(f"v_mul_f32 v{acc+r}, s65, v{acc+r}")
        for i in range(8):
            A(f"v_cvt_pk_bf16_f32 v{160+i}, v{acc+2*i}, v{acc+2*i+1}")
        A(f"v_add_u32 v61, {32*nt}, v58")
        A("v_cmp_gt_u32 vcc, s64, v61")
        A("s_and_saveexec_b64 s[66:67], vcc")
        A(f"s_cbranch_execz K1_S{nt}")
        A(f"s_mov_b32 s68, {nt*32*512}")
        A(f"buffer_store_dwordx4 v[160:163], v59, s[{sWS}:{sWS+3}], s68 offen")
        A(f"buffer_store_dwordx4 v[164:167], v59, s[{sWS}:{sWS+3}], s68 offen offset:16")
        A.label(f"K1_S{nt}")
        A("s_mov_b64 exec, s[66:67]")
        A.nop(2)
    A("s_cmp_ge_u32 s2, 68")
    A("s_cbranch_scc1 K1_END")
    A("v_lshrrev_b32 v20, 2, v0")
    A("v_and_b32 v20, 63, v20")
    A("v_and_b32 v21, 3, v0")
    A("v_lshrrev_b32 v22, 8, v0")
    A("v_and_b32 v23, 31, v20")
    A("v_lshrrev_b32 v24, 5, v20")
    A("s_cmp_ge_u32 s2, 36")
    A("s_cbranch_scc1 K1_W2")
    A("s_cmp_ge_u32 s2, 32")
    A("s_cbranch_scc1 K1_WC")
    A("s_lshl_b32 s70, s2, 1")
    A("v_add_u32 v25, s70, v22")
    A("v_lshrrev_b32 v26, 3, v25")
    A("v_and_b32 v27, 7, v25")
    A("v_lshlrev_b32 v27, 4, v27")
    A("v_lshl_add_u32 v27, v24, 3, v27")
    A("v_lshl_add_u32 v27, v21, 1, v27")
    A("v_add_u32 v27, 128, v27")
    A("v_lshl_add_u32 v28, v26, 5, v23")
    A("v_lshlrev_b32 v27, 9, v27")
    A("v_lshl_add_u32 v27, v28, 1, v27")
    A(f"buffer_load_ushort v30, v27, s[{sW1}:{sW1+3}], 0 offen")
    A(f"buffer_load_ushort v31, v27, s[{sW1}:{sW1+3}], 0 offen offset:512")
    A("s_lshl_b32 s71, s2, 11")
    A(f"s_add_u32 s71, s71, {WS_W1BF:#x}")
    A("v_lshlrev_b32 v32, 2, v0")
    A("s_waitcnt vmcnt(0)")
    A("v_lshl_or_b32 v30, v31, 16, v30")
    A(f"buffer_store_dword v30, v32, s[{sWS}:{sWS+3}], s71 offen")
    A("s_branch K1_END")
    A.label("K1_WC")
    A("s_sub_u32 s70, s2, 32")
    A("s_lshl_b32 s72, s70, 1")
    A("v_add_u32 v26, s72, v22")
    A("v_lshlrev_b32 v27, 3, v24")
    A("v_lshl_add_u32 v27, v21, 1, v27")
    A("v_add_u32 v27, 256, v27")
    A("v_lshl_add_u32 v28, v26, 5, v23")
    A("v_lshlrev_b32 v27, 9, v27")
    A("v_lshl_add_u32 v27, v28, 1, v27")
    A(f"buffer_load_ushort v30, v27, s[{sW1}:{sW1+3}], 0 offen")
    A(f"buffer_load_ushort v31, v27, s[{sW1}:{sW1+3}], 0 offen offset:512")
    A("s_lshl_b32 s71, s70, 11")
    A(f"s_add_u32 s71, s71, {WS_WCF:#x}")
    A("v_lshlrev_b32 v32, 2, v0")
    A("s_waitcnt vmcnt(0)")
    A("v_lshlrev_b32 v30, 16, v30")
    A("v_lshlrev_b32 v31, 16, v31")
    A("v_mul_f32 v30, s65, v30")
    A("v_mul_f32 v31, s65, v31")
    A("v_cvt_pk_bf16_f32 v30, v30, v31")
    A(f"buffer_store_dword v30, v32, s[{sWS}:{sWS+3}], s71 offen")
    A("s_branch K1_END")
    A.label("K1_W2")
    A("s_sub_u32 s70, s2, 36")
    A("s_lshl_b32 s72, s70, 1")
    A("v_add_u32 v25, s72, v22")
    A("v_lshrrev_b32 v26, 4, v25")
    A("v_lshrrev_b32 v27, 1, v25")
    A("v_and_b32 v27, 7, v27")
    A("v_lshlrev_b32 v27, 5, v27")
    A("v_and_b32 v28, 1, v25")
    A("v_lshlrev_b32 v28, 1, v28")
    A("v_lshrrev_b32 v29, 1, v21")
    A("v_add_u32 v28, v28, v29")
    A("v_lshl_add_u32 v27, v28, 3, v27")
    A("v_lshl_add_u32 v27, v24, 2, v27")
    A("v_and_b32 v29, 1, v21")
    A("v_lshl_add_u32 v27, v29, 1, v27")
    A("v_lshl_add_u32 v28, v26, 5, v23")
    A("v_lshlrev_b32 v27, 8, v27")
    A("v_lshl_add_u32 v27, v28, 1, v27")
    A(f"buffer_load_ushort v30, v27, s[{sW2}:{sW2+3}], 0 offen")
    A(f"buffer_load_ushort v31, v27, s[{sW2}:{sW2+3}], 0 offen offset:256")
    A("s_lshl_b32 s71, s70, 11")
    A(f"s_add_u32 s71, s71, {WS_W2F:#x}")
    A("v_lshlrev_b32 v32, 2, v0")
    A("s_waitcnt vmcnt(0)")
    A("v_lshl_or_b32 v30, v31, 16, v30")
    A(f"buffer_store_dword v30, v32, s[{sWS}:{sWS+3}], s71 offen")
    A.label("K1_END")
    A("s_endpgm")
    return name, A.text(), kd(name,176,80), K1_LDS
```

```python
from common import *
BINCNT=0; BINBASE=256; NODECNT=512; CURSOR=1024; GINFO=1040
IDT=2048; IDS=80
LCAP=2176
LA=5120; LB=LA+LCAP*4; LC=LB+LCAP*4
RAW=LC+LCAP*4
XL=RAW+16384
STG=XL+32768
K2_LDS=STG+65536
CAP=2048; MAXTOT=1920
sX=8; sE=12; sB1=16; sB2=20; sOUT=24; sA=28; sWS=32
sN0=36; sG=37; sHW=38; sSO0=39; sSO1=40; sM0=41; sCNT=42; sC0=43; sSTEP=44; sTOT=45; sBN=46; sMASK=47
vAgA=8
vDA=12
vLP0=16; vLP1=17; vLAa=18; vLBa=19; vLCa=20; vLBv=21; vEa=22; vPtA=23
vPTa=24
vH16=28; vPTl=29; vPtB=30
vT=40
vH=56; vPT=64; vPt=72; vEc=80; vEn=84; vAg=88; vSel=104; vWc=112; vBn=128; vZ=160; vS=192

class Loop:
    def __init__(self,A): self.A=A; self.q=[]
    def ds(self,text,tag): self.A(text); self.q.append(tag)
    def wait(self,tag,extra=""):
        idx=max(i for i,t in enumerate(self.q) if t==tag)
        n=min(len(self.q)-1-idx,15)
        self.A(f"s_waitcnt lgkmcnt({n})")

def mfma(d,a,b,c=None):
    cs="0" if c is None else f"v[{c}:{c+15}]"
    return f"v_mfma_f32_32x32x16_bf16 v[{d}:{d+15}], v[{a}:{a+3}], v[{b}:{b+3}], {cs}"

def silu_stream(z):
    o=[]
    for hb in range(2):
        b=8*hb
        o+=[f"v_exp_f32 v{vT+b+i}, v{z+b+i}" for i in range(8)]
        o+=[f"v_add_f32 v{vT+b+i}, 1.0, v{vT+b+i}" for i in range(8)]
        o+=[f"v_rcp_f32 v{vT+b+i}, v{vT+b+i}" for i in range(8)]
        o+=[f"v_mul_f32 v{vT+b+i}, v{vT+b+i}, v{z+b+i}" for i in range(8)]
        o+=[f"v_cvt_pk_bf16_f32 v{vH+4*hb+i}, v{vT+b+2*i}, v{vT+b+2*i+1}" for i in range(4)]
    return o

def dma(A,slot,so,i):
    A(f"s_add_u32 m0, s{sM0}, {slot*4096+i*1024}")
    A("s_nop 0")
    A(f"buffer_load_dwordx4 v{vDA+i}, s[{sA}:{sA+3}], s{so} offen lds")

def zq(kn):
    z=vZ+16*(kn&1)
    return [mfma(z,vEc,vWc+4*kn), mfma(z,vPt,vBn+8*kn,z), mfma(z,vPt+4,vBn+8*kn+4,z),
            mfma(z,vAg+8*(kn&1),vSel,z), mfma(z,vAg+8*(kn&1)+4,vSel+4,z)]

def ag_reads(L,slot):
    for q in range(4):
        L.ds(f"ds_read_b128 v[{vAg+4*q}:{vAg+4*q+3}], v{vAgA+q} offset:{slot*4096}","Ag")
def da_add(A):
    for i in range(4): A(f"v_add_u32 v{vDA+i}, v{vDA+i}, v{vLP0+(i&1)}")
def lb_decode(A):
    A(f"v_and_or_b32 v{vEa}, v{vLBv}, s{sMASK}, v{vH16}")
    A(f"v_lshrrev_b32 v{vLBv}, 24, v{vLBv}")
    A(f"v_mad_u32_u24 v{vPtA}, v{vLBv}, v31, v{vPtB}")
def pt_reads(L):
    L.ds(f"ds_read_b128 v[{vPt}:{vPt+3}], v{vPtA}","Pt")
    L.ds(f"ds_read_b128 v[{vPt+4}:{vPt+7}], v{vPtA} offset:32","Pt")
def e_load(A): A(f"buffer_load_dwordx4 v[{vEn}:{vEn+3}], v{vEa}, s[{sE}:{sE+3}], 0 offen")
def e_mov(A):
    for i in range(4): A(f"v_mov_b32 v{vEc+i}, v{vEn+i}")
def pta_add(A):
    for i in range(4): A(f"v_add_u32 v{vPTa+i}, v{vPTa+i}, v{vPTl}")

def nstep(A,L,k):
    z=vZ+16*(k&1); kn=(k+1)&3; kp=(k-1)&3
    val=silu_stream(z)
    mz=zq(kn)
    seg2=mfma(vS+16*kp,vH+4,vPT+4,vS+16*kp)
    seg1=mfma(vS+16*k,vH,vPT,vS+16*k)
    ev={}
    def at(p,f): ev.setdefault(p,[]).append(f)
    if k==0:
        def f0():
            L.ds(f"ds_read_b64_tr_b16 v[{vPT}:{vPT+1}], v{vPTa}","PT0")
            L.ds(f"ds_read_b64_tr_b16 v[{vPT+2}:{vPT+3}], v{vPTa+1}","PT0")
            A(seg2)
            L.ds(f"ds_read_b64_tr_b16 v[{vPT+4}:{vPT+5}], v{vPTa+2}","PT1")
            L.ds(f"ds_read_b64_tr_b16 v[{vPT+6}:{vPT+7}], v{vPTa+3}","PT1")
        at(0,f0)
    if k==1:
        def f0():
            A("s_waitcnt vmcnt(5)")
            ag_reads(L,1)
            L.wait("PT1")
            A(seg2)
        at(0,f0)
        at(16,lambda: L.wait("Ag"))
        for i in range(4): at(16+2*i,(lambda i=i: dma(A,1,sSO1,i)))
        at(26,lambda: L.ds(f"ds_read_b128 v[{vDA}:{vDA+3}], v{vLAa}","LA"))
    if k==2:
        def f0():
            L.wait("LA"); da_add(A); A(seg2)
        at(0,f0)
        def f24():
            pt_reads(L)
            L.ds(f"ds_read_b32 v{vLBv}, v{vLBa}","LB")
        at(24,f24)
        at(40,lambda: (L.wait("LB"), lb_decode(A)))
    if k==3:
        def f0():
            A("s_waitcnt vmcnt(4)")
            ag_reads(L,0)
            e_mov(A)
            A(seg2)
        at(0,f0)
        at(6,lambda: L.wait("Pt"))
        at(16,lambda: L.wait("Ag"))
        for i in range(4): at(16+2*i,(lambda i=i: dma(A,0,sSO0,i)))
        at(24,lambda: e_load(A))
        at(26,lambda: L.ds(f"ds_read_b128 v[{vPTa}:{vPTa+3}], v{vLCa}","LC"))
        def f42():
            L.wait("LC"); pta_add(A)
            A(f"v_add_u32 v{vLAa}, 128, v{vLAa}")
            A(f"v_add_u32 v{vLBa}, 128, v{vLBa}")
            A(f"v_add_u32 v{vLCa}, 128, v{vLCa}")
        at(42,f42)
    for p,m in zip((6,14,22,30,38),mz): at(p,(lambda m=m: A(m)))
    if k==0: at(46,lambda: L.wait("PT0"))
    at(46,lambda: A(seg1))
    for i,v in enumerate(val):
        for f in ev.get(i,[]): f()
        A(v)

def gen_k2():
    A=Asm()
    name=KNAME+"_kernel"
    A(f".globl {name}\n.p2align 8\n.type {name},@function")
    A.label(name)
    A("s_cmp_ge_u32 s2, 256")
    A("s_cbranch_scc1 K2_END")
    A("s_load_dwordx4 s[64:67], s[0:1], 0")
    A("s_load_dwordx2 s[68:69], s[0:1], 40")
    A("s_load_dwordx4 s[72:75], s[0:1], 56")
    A("s_load_dwordx2 s[76:77], s[0:1], 80")
    A("v_and_b32 v1, 63, v0")
    A("v_lshrrev_b32 v2, 6, v0")
    A.nop(1)
    A("v_readfirstlane_b32 s3, v2")
    A("s_waitcnt lgkmcnt(0)")
    srd(A,sX,64,65,N*256)
    srd(A,sE,66,67,E*32)
    srd(A,sB1,68,69,512)
    srd(A,sB2,72,73,256)
    srd(A,sOUT,74,75,N*256)
    srd(A,sA,76,77,N*512)
    srd(A,sWS,76,77,WS_END)
    A(f"s_mul_i32 s{sN0}, s2, {NPW}")
    A(f"s_lshr_b32 s{sG}, s3, 1")
    A(f"s_and_b32 s{sHW}, s3, 1")
    A(f"s_lshl_b32 s{sSO0}, s{sHW}, 8")
    A(f"s_add_u32 s{sSO1}, s{sSO0}, 128")
    A(f"s_lshl_b32 s{sM0}, s3, 13")
    A(f"s_add_u32 s{sM0}, s{sM0}, {STG}")
    A(f"s_mov_b32 s{sMASK}, 0x00ffffff")
    A(f"s_mov_b32 s{sBN}, 0")
    A(f"s_mov_b32 s{sC0}, 0")
    A(f"s_mov_b32 s{sSTEP}, 256")
    A("v_lshrrev_b32 v4, 1, v0")
    A("v_lshlrev_b32 v5, 2, v4")
    A("s_lshl_b32 s48, s2, 10")
    A(f"s_add_u32 s48, s48, {WS_CS:#x}")
    A(f"buffer_load_dword v3, v5, s[{sWS}:{sWS+3}], s48 offen")
    A("v_lshlrev_b32 v6, 4, v1")
    A("s_lshl_b32 s49, s3, 13")
    for i in range(8):
        A(f"s_add_u32 s50, s49, {WS_W1BF+i*1024:#x}")
        A(f"s_add_u32 m0, s{sM0}, {i*1024}")
        A.nop(1)
        A(f"buffer_load_dwordx4 v6, s[{sWS}:{sWS+3}], s50 offen lds")
    A("v_lshrrev_b32 v32, 4, v1")
    A("v_and_b32 v33, 15, v1")
    A("v_xor_b32 v33, v33, v32")
    A("v_lshlrev_b32 v33, 4, v33")
    A("s_lshl_b32 s48, s3, 4")
    A(f"s_add_u32 s48, s48, s{sN0}")
    A("v_add_u32 v34, s48, v32")
    A("v_lshlrev_b32 v34, 8, v34")
    A("s_lshl_b32 s49, s3, 12")
    A(f"s_add_u32 s49, s49, {XL}")
    for i in range(4):
        A(f"v_xor_b32 v35, {64*i}, v33")
        A("v_add_u32 v35, v34, v35")
        A(f"s_mov_b32 s50, {i*1024}")
        A(f"s_add_u32 m0, s49, {i*1024}")
        A.nop(1)
        A(f"buffer_load_dwordx4 v35, s[{sX}:{sX+3}], s50 offen lds")
    A(f"s_lshl_b32 s48, s{sHW}, 12")
    A(f"s_add_u32 s48, s48, {WS_WCF:#x}")
    for k in range(4):
        A(f"buffer_load_dwordx4 v[{vWc+4*k}:{vWc+4*k+3}], v6, s[{sWS}:{sWS+3}], s48 offen offset:{k*1024}")
    A("v_and_b32 v7, 31, v1")
    A("v_lshlrev_b32 v36, 1, v7")
    A(f"s_lshl_b32 s48, s{sHW}, 8")
    for k in range(4):
        A(f"buffer_load_ushort v{32+k}, v36, s[{sB1}:{sB1+3}], s48 offen offset:{k*64}")
    A("v_mov_b32 v37, 0")
    A("v_lshlrev_b32 v38, 2, v0")
    A("v_cmp_gt_u32 vcc, 272, v0")
    A("s_and_saveexec_b64 s[50:51], vcc")
    A("ds_write_b32 v38, v37")
    A("s_mov_b64 exec, s[50:51]")
    for rnd in range(2):
        A(f"v_add_u32 v39, {512*rnd}, v0")
        A("v_mul_u32_u24 v40, 3277, v39")
        A("v_lshrrev_b32 v40, 16, v40")
        A("v_mul_u32_u24 v41, 20, v40")
        A("v_sub_u32 v41, v39, v41")
        A("v_lshlrev_b32 v41, 1, v41")
        A("v_mov_b32 v42, 0")
        A("v_mov_b32 v43, 0x3f80")
        A("v_cmp_eq_u32 vcc, v40, v41")
        A.nop(2)
        A("v_cndmask_b32 v42, v42, v43, vcc")
        A("v_add_u32 v41, 1, v41")
        A("v_mov_b32 v43, 0x3f800000")
        A("v_cmp_eq_u32 vcc, v40, v41")
        A.nop(2)
        A("v_cndmask_b32 v42, v42, v43, vcc")
        A("v_cmp_gt_u32 vcc, 32, v40")
        A.nop(2)
        A("v_cndmask_b32 v42, 0, v42, vcc")
        A("v_lshlrev_b32 v41, 2, v39")
        A("v_cmp_gt_u32 vcc, 660, v39")
        A("s_and_saveexec_b64 s[50:51], vcc")
        A(f"ds_write_b32 v41, v42 offset:{IDT}")
        A("s_mov_b64 exec, s[50:51]")
    A("v_lshrrev_b32 v44, 5, v1")
    A(f"v_lshlrev_b32 v{vH16}, 4, v44")
    A(f"v_add_u32 v{vPtB}, {IDT}, v{vH16}")
    A(f"v_mov_b32 v31, {IDS}")
    A("v_lshrrev_b32 v45, 4, v1")
    A("v_and_b32 v45, 1, v45")
    A("v_lshlrev_b32 v45, 5, v45")
    A("v_and_b32 v46, 3, v1")
    A("v_lshl_add_u32 v45, v46, 3, v45")
    A(f"v_add_u32 v{vPTl}, {IDT}, v45")
    A("v_and_b32 v45, 7, v1")
    A("v_lshrrev_b32 v46, 4, v1")
    A("v_xor_b32 v45, v45, v46")
    A(f"v_lshlrev_b32 v{vLP0}, 4, v45")
    A(f"v_xor_b32 v{vLP1}, 64, v{vLP0}")
    A("v_lshrrev_b32 v45, 1, v7")
    A("v_and_b32 v45, 7, v45")
    A("v_xor_b32 v45, v45, v44")
    A("v_lshlrev_b32 v45, 4, v45")
    A("v_lshlrev_b32 v46, 7, v7")
    A(f"v_add_u32 v46, s{sM0}, v46")
    for q in range(4):
        A(f"v_xor_b32 v47, {32*q}, v45")
        A(f"v_add_u32 v{vAgA+q}, v46, v47")
    for qq in range(2):
        A("v_lshlrev_b32 v45, 4, v44")
        A("v_sub_u32 v45, v7, v45")
        A(f"v_subrev_u32 v45, {4*qq}, v45")
        for i in range(4):
            j0,j1=2*i,2*i+1
            t0=8*(j0>>2)+(j0&3); t1=8*(j1>>2)+(j1&3)
            A("v_mov_b32 v46, 0x3f80")
            A(f"v_cmp_eq_u32 vcc, {t0}, v45")
            A.nop(2)
            A(f"v_cndmask_b32 v47, 0, v46, vcc")
            A("v_mov_b32 v46, 0x3f800000")
            A(f"v_cmp_eq_u32 vcc, {t1}, v45")
            A.nop(2)
            A(f"v_cndmask_b32 v48, 0, v46, vcc")
            A(f"v_or_b32 v{vSel+4*qq+i}, v47, v48")
    for i in range(64): A(f"v_mov_b32 v{vS+i}, 0")
    A.label("K2_BATCH")
    A("v_mov_b32 v48, 0\nv_mov_b32 v49, 0\nv_mov_b32 v50, 0\nv_mov_b32 v51, 0")
    A("v_mov_b32 v52, 0x20000000\nv_mov_b32 v53, 0x20000000\nv_mov_b32 v54, 0x20000000\nv_mov_b32 v55, 0x20000000")
    A(f"v_mov_b32 v56, {32*IDS}\nv_mov_b32 v57, {32*IDS}\nv_mov_b32 v58, {32*IDS}\nv_mov_b32 v59, {32*IDS}")
    A("v_lshlrev_b32 v45, 4, v0")
    A(f"v_add_u32 v46, {LA}, v45")
    A("ds_write_b128 v46, v[48:51]")
    A(f"ds_write_b128 v46, v[52:55] offset:{LB-LA}")
    A(f"ds_write_b128 v46, v[56:59] offset:{LC-LA}")
    A("v_cmp_gt_u32 vcc, 32, v0")
    A("s_and_saveexec_b64 s[50:51], vcc")
    A("ds_write_b128 v46, v[48:51] offset:8192")
    A(f"ds_write_b128 v46, v[52:55] offset:{LB-LA+8192}")
    A(f"ds_write_b128 v46, v[56:59] offset:{LC-LA+8192}")
    A("v_lshlrev_b32 v47, 2, v0")
    A(f"ds_write_b32 v47, v48 offset:{BINCNT}")
    A(f"ds_write_b32 v47, v48 offset:{BINCNT+128}")
    A(f"ds_write_b32 v47, v48 offset:{CURSOR}")
    A("s_mov_b64 exec, s[50:51]")
    A("s_waitcnt lgkmcnt(0)")
    A("s_barrier")
    A("s_waitcnt vmcnt(20)")
    A("v_lshrrev_b32 v60, 1, v0")
    A("v_and_b32 v61, 1, v0")
    A("v_lshrrev_b32 v62, 16, v3")
    A(f"v_subrev_u32 v63, s{sC0}, v60")
    A(f"v_cmp_gt_u32 vcc, s{sSTEP}, v63")
    A.nop(2)
    A("v_cndmask_b32 v62, 0, v62, vcc")
    A("v_and_b32 v63, 0xffff, v3")
    A(f"v_mul_u32_u24 v64, {CH}, v60")
    A("v_add3_u32 v64, v64, v63, v61")
    A("v_lshlrev_b32 v64, 3, v64")
    A(f"s_mov_b32 s48, {WS_REC:#x}")
    A.label("K2_PA")
    for k in range(4):
        A(f"v_add_u32 v65, {2*k}, v61")
        A(f"v_cmp_gt_u32 s[{50+2*k}:{51+2*k}], v62, v65")
    A.nop(4)
    A("s_cmp_eq_u64 s[50:51], 0")
    A("s_cbranch_scc1 K2_PA_END")
    for k in range(4):
        A(f"buffer_load_dwordx2 v[{66+2*k}:{67+2*k}], v64, s[{sWS}:{sWS+3}], s48 offen offset:{16*k}")
    for k in range(4):
        A(f"s_bcnt1_i32_b64 s{58+k}, s[{50+2*k}:{51+2*k}]")
    A("s_add_u32 s62, s58, s59\ns_add_u32 s63, s62, s60\ns_add_u32 s49, s63, s61")
    A("s_mov_b64 s[78:79], exec")
    A("s_mov_b64 exec, 1")
    A("v_mov_b32 v74, s49")
    A("v_mov_b32 v75, 0")
    A(f"ds_add_rtn_u32 v74, v75, v74 offset:{CURSOR}")
    A("s_waitcnt lgkmcnt(0)")
    A("v_readfirstlane_b32 s49, v74")
    A("s_mov_b64 exec, s[78:79]")
    A.nop(4)
    offs=["0","s58","s62","s63"]
    for k in range(4):
        A(f"v_mbcnt_lo_u32_b32 v{76+k}, s{50+2*k}, 0")
        A(f"v_mbcnt_hi_u32_b32 v{76+k}, s{51+2*k}, v{76+k}")
        A(f"v_add_u32 v{76+k}, s49, v{76+k}")
        if k: A(f"v_add_u32 v{76+k}, {offs[k]}, v{76+k}")
    A("s_waitcnt vmcnt(0)")
    A("v_mov_b32 v80, 1")
    for k in range(4):
        w0,w1=66+2*k,67+2*k
        A(f"s_mov_b64 exec, s[{50+2*k}:{51+2*k}]")
        A(f"v_lshrrev_b32 v81, 16, v{w0}")
        A(f"v_and_b32 v{w0}, 0xffff, v{w0}")
        A("v_mul_u32_u24 v82, 41, v81")
        A("v_lshrrev_b32 v82, 10, v82")
        A("v_mul_u32_u24 v83, 25, v82")
        A("v_sub_u32 v83, v81, v83")
        A(f"v_mul_u32_u24 v84, 335, v{w0}")
        A("v_lshrrev_b32 v84, 19, v84")
        A("v_lshl_add_u32 v84, v82, 4, v84")
        A(f"v_lshl_or_b32 v{w0}, v83, 15, v{w0}")
        A(f"v_lshl_or_b32 v{w0}, v84, 20, v{w0}")
        A("v_lshlrev_b32 v84, 2, v84")
        A(f"ds_add_rtn_u32 v{86+k}, v84, v80 offset:{BINCNT}")
        A("v_lshlrev_b32 v81, 2, v81")
        A(f"ds_add_u32 v81, v80 offset:{NODECNT}")
    A("s_mov_b64 exec, s[78:79]")
    A("s_waitcnt lgkmcnt(0)")
    for k in range(4):
        w0,w1=66+2*k,67+2*k
        A(f"s_mov_b64 exec, s[{50+2*k}:{51+2*k}]")
        A(f"v_cmp_gt_u32 vcc, {CAP}, v{76+k}")
        A("s_and_b64 exec, exec, vcc")
        A(f"v_lshl_or_b32 v{w1}, v{86+k}, 19, v{w1}")
        A(f"v_lshlrev_b32 v81, 3, v{76+k}")
        A(f"v_add_u32 v81, {RAW}, v81")
        A(f"ds_write_b64 v81, v[{w0}:{w1}]")
    A("s_mov_b64 exec, s[78:79]")
    A("v_add_u32 v61, 8, v61")
    A("v_add_u32 v64, 64, v64")
    A("s_branch K2_PA")
    A.label("K2_PA_END")
    A("s_waitcnt vmcnt(0) lgkmcnt(0)")
    A("s_barrier")
    A("v_mov_b32 v75, 0")
    A(f"ds_read_b32 v74, v75 offset:{CURSOR}")
    A("s_waitcnt lgkmcnt(0)")
    A(f"v_readfirstlane_b32 s{sTOT}, v74")
    A.nop(4)
    A(f"s_cmp_le_u32 s{sTOT}, {MAXTOT}")
    A("s_cbranch_scc1 K2_FIT")
    A(f"s_min_u32 s{sTOT}, s{sTOT}, {CAP}")
    A(f"s_cmp_eq_u32 s{sSTEP}, 1")
    A("s_cbranch_scc1 K2_FIT")
    A(f"s_mov_b32 s{sSTEP}, 1")
    A(f"s_mov_b32 s{sC0}, 0")
    A("s_barrier")
    A("v_mov_b32 v37, 0")
    A("v_lshlrev_b32 v38, 2, v0")
    A("v_cmp_gt_u32 vcc, 128, v0")
    A("s_and_saveexec_b64 s[50:51], vcc")
    A(f"ds_write_b32 v38, v37 offset:{NODECNT}")
    A("s_mov_b64 exec, s[50:51]")
    A("s_branch K2_BATCH")
    A.label("K2_FIT")
    A("s_cmp_lg_u32 s3, 0")
    A("s_cbranch_scc1 K2_NOPFX")
    A("v_lshlrev_b32 v60, 2, v1")
    A(f"ds_read_b32 v61, v60 offset:{BINCNT}")
    A("s_waitcnt lgkmcnt(0)")
    A("v_mov_b32 v62, v61")
    for sh in (1,2,4,8):
        A.nop(2)
        A(f"v_add_u32_dpp v62, v62, v62 row_shr:{sh} row_mask:0xf bank_mask:0xf bound_ctrl:0")
    A.nop(1)
    for g in range(4): A(f"v_readlane_b32 s{50+g}, v62, {16*g+15}")
    A.nop(4)
    for g in range(4):
        A(f"s_add_u32 s{50+g}, s{50+g}, 31")
        A(f"s_lshr_b32 s{50+g}, s{50+g}, 5")
    A("s_mov_b32 s54, 0\ns_mov_b32 s55, s50\ns_add_u32 s56, s55, s51\ns_add_u32 s57, s56, s52")
    A("v_sub_u32 v62, v62, v61")
    A("v_mov_b32 v63, 0")
    for g in range(1,4):
        A(f"s_lshl_b32 s58, s{54+g}, 5")
        A("v_mov_b32 v64, s58")
        A(f"v_cmp_le_u32 vcc, {16*g}, v1")
        A.nop(2)
        A("v_cndmask_b32 v63, v63, v64, vcc")
    A("v_add_u32 v62, v62, v63")
    A(f"ds_write_b32 v60, v62 offset:{BINBASE}")
    A("s_mov_b64 s[78:79], exec")
    A("s_mov_b64 exec, 1")
    for i in range(8): A(f"v_mov_b32 v{64+i}, s{50+i}")
    A("v_mov_b32 v72, 0")
    A(f"ds_write_b128 v72, v[64:67] offset:{GINFO}")
    A(f"ds_write_b128 v72, v[68:71] offset:{GINFO+16}")
    A("s_mov_b64 exec, s[78:79]")
    A.label("K2_NOPFX")
    A(f"s_cmp_lg_u32 s{sBN}, 0")
    A("s_cbranch_scc1 K2_BN_DONE")
    A(f"s_mov_b32 s{sBN}, 1")
    A("v_and_b32 v36, 0x13, v7")
    A("v_and_b32 v37, 4, v7")
    A("v_lshlrev_b32 v37, 1, v37")
    A("v_and_b32 v38, 8, v7")
    A("v_lshrrev_b32 v38, 1, v38")
    A("v_or3_b32 v36, v36, v37, v38")
    A(f"s_mul_i32 s50, s{sG}, 25")
    A("v_add_u32 v36, s50, v36")
    A("v_and_b32 v37, 15, v36")
    A("v_xor_b32 v37, v37, v44")
    A("v_lshlrev_b32 v37, 4, v37")
    A("v_lshlrev_b32 v36, 8, v36")
    A(f"v_add_u32 v36, {XL}, v36")
    Xo=160
    for s in range(8):
        A(f"v_xor_b32 v38, {32*s}, v37")
        A("v_add_u32 v38, v36, v38")
        A(f"ds_read_b128 v[{Xo+4*s}:{Xo+4*s+3}], v38")
    A("v_lshlrev_b32 v39, 4, v1")
    A(f"s_lshl_b32 s50, s{sHW}, 15")
    A(f"s_add_u32 s50, s50, {STG}")
    A("v_add_u32 v39, s50, v39")
    A(f"s_mov_b32 s51, {f2u(SCALE):#x}")
    Wo=48; acc=80
    for k in range(4):
        for s in range(8):
            A(f"ds_read_b128 v[{Wo+4*s}:{Wo+4*s+3}], v39 offset:{(k*8+s)*1024}")
        A("s_waitcnt lgkmcnt(0)")
        for s in range(8):
            c="0" if s==0 else f"v[{acc}:{acc+15}]"
            A(f"v_mfma_f32_32x32x16_bf16 v[{acc}:{acc+15}], v[{Xo+4*s}:{Xo+4*s+3}], v[{Wo+4*s}:{Wo+4*s+3}], {c}")
        A(f"v_lshlrev_b32 v{32+k}, 16, v{32+k}")
        A.nop(16)
        for r in range(16):
            A(f"v_add_f32 v{acc+r}, v{acc+r}, v{32+k}")
            A(f"v_mul_f32 v{acc+r}, s51, v{acc+r}")
        for i in range(8):
            A(f"v_cvt_pk_bf16_f32 v{vBn+8*k+i}, v{acc+2*i}, v{acc+2*i+1}")
    A.label("K2_BN_DONE")
    A("s_waitcnt lgkmcnt(0)")
    A("s_barrier")
    for it in range(4):
        A(f"v_add_u32 v60, {512*it}, v0")
        A(f"v_cmp_gt_u32 vcc, s{sTOT}, v60")
        A("s_and_saveexec_b64 s[50:51], vcc")
        A("v_lshlrev_b32 v61, 3, v60")
        A(f"v_add_u32 v61, {RAW}, v61")
        A("ds_read_b64 v[62:63], v61")
        A("s_waitcnt lgkmcnt(0)")
        A("v_bfe_u32 v64, v62, 20, 6")
        A("v_lshlrev_b32 v64, 2, v64")
        A(f"ds_read_b32 v65, v64 offset:{BINBASE}")
        A("v_lshrrev_b32 v66, 19, v63")
        A("v_bfe_u32 v67, v62, 15, 5")
        A("v_and_b32 v68, 0x7fff, v62")
        A("v_lshlrev_b32 v68, 9, v68")
        A("v_and_b32 v69, 0x7ffff, v63")
        A("v_lshlrev_b32 v69, 5, v69")
        A("v_lshl_or_b32 v69, v67, 24, v69")
        A(f"v_mul_u32_u24 v70, {IDS}, v67")
        A("s_waitcnt lgkmcnt(0)")
        A("v_add_u32 v65, v65, v66")
        A("v_and_b32 v71, 7, v65")
        A("v_lshlrev_b32 v71, 2, v71")
        A("v_bfe_u32 v72, v65, 3, 2")
        A("v_and_b32 v73, 0xffffffe0, v65")
        A("v_add3_u32 v71, v71, v72, v73")
        A("v_lshlrev_b32 v71, 2, v71")
        A("v_lshlrev_b32 v65, 2, v65")
        A(f"ds_write_b32 v71, v68 offset:{LA}")
        A(f"ds_write_b32 v71, v70 offset:{LC}")
        A(f"ds_write_b32 v65, v69 offset:{LB}")
        A("s_mov_b64 exec, s[50:51]")
    A("s_waitcnt lgkmcnt(0)")
    A("s_barrier")
    A(f"s_lshl_b32 s50, s{sG}, 2")
    A("v_mov_b32 v60, s50")
    A(f"ds_read_b32 v61, v60 offset:{GINFO}")
    A(f"ds_read_b32 v62, v60 offset:{GINFO+16}")
    A("s_waitcnt lgkmcnt(0)")
    A(f"v_readfirstlane_b32 s{sCNT}, v61")
    A("v_readfirstlane_b32 s51, v62")
    A.nop(4)
    A(f"s_min_u32 s{sCNT}, s{sCNT}, 66")
    A("s_min_u32 s51, s51, 66")
    A(f"s_cmp_eq_u32 s{sCNT}, 0")
    A("s_cbranch_scc1 K2_LOOP_DONE")
    L=Loop(A)
    A("s_lshl_b32 s51, s51, 7")
    A("v_lshrrev_b32 v60, 3, v1")
    A("v_lshlrev_b32 v60, 4, v60")
    A(f"v_add_u32 v{vLAa}, s51, v60")
    A(f"v_add_u32 v{vLAa}, {LA}, v{vLAa}")
    A("v_lshlrev_b32 v60, 2, v7")
    A(f"v_add_u32 v{vLBa}, s51, v60")
    A(f"v_add_u32 v{vLBa}, {LB}, v{vLBa}")
    A("v_lshrrev_b32 v60, 2, v1")
    A("v_and_b32 v60, 3, v60")
    A("v_lshrrev_b32 v61, 5, v1")
    A("v_lshl_add_u32 v60, v61, 2, v60")
    A("v_lshlrev_b32 v60, 4, v60")
    A(f"v_add_u32 v{vLCa}, s51, v60")
    A(f"v_add_u32 v{vLCa}, {LC}, v{vLCa}")
    L.ds(f"ds_read_b128 v[{vDA}:{vDA+3}], v{vLAa}","LA")
    L.ds(f"ds_read_b32 v{vLBv}, v{vLBa}","LB")
    L.wait("LB"); da_add(A); lb_decode(A)
    for i in range(4): dma(A,0,sSO0,i)
    e_load(A)
    for i in range(4): dma(A,1,sSO1,i)
    L.ds(f"ds_read_b128 v[{vDA}:{vDA+3}], v{vLAa} offset:128","LA")
    pt_reads(L)
    L.ds(f"ds_read_b32 v{vLBv}, v{vLBa} offset:128","LB")
    L.wait("LB"); da_add(A); lb_decode(A)
    A("s_waitcnt vmcnt(4)")
    ag_reads(L,0)
    e_mov(A)
    L.wait("Ag")
    for i in range(4): dma(A,0,sSO0,i)
    e_load(A)
    L.ds(f"ds_read_b128 v[{vPTa}:{vPTa+3}], v{vLCa}","LC")
    L.wait("LC"); pta_add(A)
    for m in zq(0): A(m)
    A(f"v_add_u32 v{vLAa}, 256, v{vLAa}")
    A(f"v_add_u32 v{vLBa}, 256, v{vLBa}")
    A(f"v_add_u32 v{vLCa}, 128, v{vLCa}")
    for i in range(4):
        A(f"v_mov_b32 v{vH+4+i}, 0")
        A(f"v_mov_b32 v{vPT+4+i}, 0")
    A.nop(16)
    A(".p2align 6")
    A.label("K2_LOOP")
    L=Loop(A)
    for k in range(4): nstep(A,L,k)
    A(f"s_sub_u32 s{sCNT}, s{sCNT}, 1")
    A(f"s_cmp_lg_u32 s{sCNT}, 0")
    A("s_cbranch_scc1 K2_LOOP")
    A.nop(2)
    A(mfma(vS+48,vH+4,vPT+4,vS+48))
    A.label("K2_LOOP_DONE")
    A("s_waitcnt vmcnt(0) lgkmcnt(0)")
    A(f"s_add_u32 s{sC0}, s{sC0}, s{sSTEP}")
    A(f"s_cmp_lt_u32 s{sC0}, 256")
    A("s_cbranch_scc0 K2_EPI")
    A("s_barrier")
    A("s_branch K2_BATCH")
    A.label("K2_EPI")
    A("s_barrier")
    A("s_and_b32 s50, s3, 3")
    A("s_lshl_b32 s51, s50, 14")
    A(f"s_add_u32 s51, s51, {WS_W2F:#x}")
    A("v_lshlrev_b32 v6, 4, v1")
    for i in range(16):
        A(f"s_add_u32 s52, s51, {(i//4)*4096}")
        A(f"buffer_load_dwordx4 v[{64+4*i}:{67+4*i}], v6, s[{sWS}:{sWS+3}], s52 offen offset:{(i%4)*1024}")
    A("v_lshrrev_b32 v44, 5, v1")
    A("v_lshlrev_b32 v45, 3, v44")
    A("s_lshl_b32 s52, s50, 6")
    for g4 in range(4):
        A(f"buffer_load_dwordx2 v[{32+2*g4}:{33+2*g4}], v45, s[{sB2}:{sB2+3}], s52 offen offset:{g4*16}")
    A.nop(16)
    A(f"s_mov_b32 s53, {f2u(ISCALE):#x}")
    A(f"s_lshl_b32 s54, s{sG}, 3")
    A(f"s_lshl_b32 s55, s{sHW}, 2")
    A("s_add_u32 s54, s54, s55")
    A("s_lshl_b32 s54, s54, 11")
    A(f"s_add_u32 s54, s54, {STG}")
    A("v_add_u32 v46, s54, v6")
    for k in range(4):
        for r in range(16): A(f"v_mul_f32 v{vS+16*k+r}, s53, v{vS+16*k+r}")
        for i in range(8): A(f"v_cvt_pk_bf16_f32 v{48+i}, v{vS+16*k+2*i}, v{vS+16*k+2*i+1}")
        A(f"ds_write_b128 v46, v[48:51] offset:{k*2048}")
        A(f"ds_write_b128 v46, v[52:55] offset:{k*2048+1024}")
        A("s_waitcnt lgkmcnt(0)")
    A("s_barrier")
    A("s_waitcnt vmcnt(0)")
    for g4 in range(4):
        for h in range(2):
            A(f"v_lshlrev_b32 v{8+4*g4+2*h}, 16, v{32+2*g4+h}")
            A(f"v_and_b32 v{8+4*g4+2*h+1}, 0xffff0000, v{32+2*g4+h}")
    A("s_lshr_b32 s55, s3, 2")
    A(f"s_add_u32 s60, s{sN0}, {NPW}")
    A(f"s_min_u32 s60, s60, {N}")
    for gi in range(2):
        A("s_lshl_b32 s56, s55, 1")
        A(f"s_add_u32 s56, s56, {gi}")
        A("s_lshl_b32 s57, s56, 14")
        A(f"s_add_u32 s57, s57, {STG}")
        A("v_add_u32 v46, s57, v6")
        for i in range(16):
            A(f"ds_read_b128 v[{128+4*i}:{131+4*i}], v46 offset:{i*1024}")
        A("s_mul_i32 s58, s56, 25")
        A("v_add_u32 v47, s58, v7")
        A("v_lshlrev_b32 v48, 2, v47")
        A(f"ds_read_b32 v49, v48 offset:{NODECNT}")
        A("s_waitcnt lgkmcnt(0)")
        acc=192
        for i in range(16):
            c="0" if i==0 else f"v[{acc}:{acc+15}]"
            A(f"v_mfma_f32_32x32x16_bf16 v[{acc}:{acc+15}], v[{64+4*i}:{67+4*i}], v[{128+4*i}:{131+4*i}], {c}")
        A("v_cvt_f32_u32 v49, v49")
        A.nop(16)
        for r in range(16): A(f"v_fma_f32 v{acc+r}, v49, v{8+r}, v{acc+r}")
        for i in range(8): A(f"v_cvt_pk_bf16_f32 v{208+i}, v{acc+2*i}, v{acc+2*i+1}")
        A(f"v_add_u32 v50, s{sN0}, v47")
        A("v_cmp_gt_u32 vcc, s60, v50")
        A("v_cmp_gt_u32 s[58:59], 25, v7")
        A.nop(2)
        A("s_and_b64 vcc, vcc, s[58:59]")
        A("s_and_saveexec_b64 s[58:59], vcc")
        A(f"s_cbranch_execz K2_ST{gi}")
        A("v_lshlrev_b32 v50, 8, v50")
        A("v_add_u32 v50, v50, v45")
        for g4 in range(4):
            A(f"buffer_store_dwordx2 v[{208+2*g4}:{209+2*g4}], v50, s[{sOUT}:{sOUT+3}], s52 offen offset:{g4*16}")
        A.label(f"K2_ST{gi}")
        A("s_mov_b64 exec, s[58:59]")
        A.nop(2)
    A.label("K2_END")
    A("s_endpgm")
    return name, A.text(), kd(name,256,96), K2_LDS
```

```python
import sys
from common import *
from k1 import gen_k1
HEADER=open("cdna_kernels/"+KNAME+".s.ref").read().split("; Override launch")[0]
def build(parts,path):
    out=[HEADER.rstrip()]
    for (name,text,kdesc,lds,grid,block) in parts:
        out.append(f"; @launch kernel={name} grid=({grid},1,1) block=({block},1,1) lds={lds}")
    out.append('.amdgcn_target "amdgcn-amd-amdhsa--gfx950"')
    out.append(".text")
    for p in parts: out.append(p[1])
    out.append('.section .rodata,"a"')
    for p in parts: out.append(p[2])
    open(path,"w").write("\n".join(out)+"\n")
if __name__=="__main__":
    which=sys.argv[1] if len(sys.argv)>1 else "all"
    path=sys.argv[2] if len(sys.argv)>2 else "k.s"
    parts=[]
    n,t,k,l=gen_k1(); parts.append((n,t,k,l,256,512))
    if which!="k1":
        from k2 import gen_k2
        n,t,k,l=gen_k2(); parts.append((n,t,k,l,256,512))
    build(parts,path)
```

```python
import struct
N=25000; E=400000; D=128; H=256
NPW=98; NWG=256; CH=1564
KNAME="gather_scatter__edge_featured_mpnn_mpnn__graph"
WS_ATAB=0
WS_REC=0xD00000
WS_CS=0x1100000
WS_W1BF=0x1180000
WS_WCF=0x1190000
WS_W2F=0x11A0000
WS_LUT=0x11C0000
WS_END=0x1200000
def f2u(f): return struct.unpack("<I",struct.pack("<f",f))[0]
SCALE=-1.4426950408889634
ISCALE=-0.6931471805599453

class Asm:
    def __init__(self): self.l=[]
    def __call__(self,s):
        for x in s.split("\n"):
            x=x.strip()
            if x: self.l.append(x if x.endswith(":") else "  "+x)
    def label(self,n): self.l.append(n+":")
    def nop(self,n=1):
        while n>0:
            k=min(n,16); self.l.append(f"  s_nop {k-1}"); n-=k
    def text(self): return "\n".join(self.l)
def vr(a,n=1): return f"v{a}" if n==1 else f"v[{a}:{a+n-1}]"
def sr(a,n=1): return f"s{a}" if n==1 else f"s[{a}:{a+n-1}]"

def srd(A,s,base_lo,base_hi,size,add=0):
    if add:
        A(f"s_add_u32 s{s}, s{base_lo}, {add:#x}")
        A(f"s_addc_u32 s{s+1}, s{base_hi}, 0")
    else:
        A(f"s_mov_b32 s{s}, s{base_lo}")
        A(f"s_mov_b32 s{s+1}, s{base_hi}")
    A(f"s_mov_b32 s{s+2}, {size:#x}")
    A(f"s_mov_b32 s{s+3}, 0x00020000")

def kd(name,vgpr,sgpr):
    return f""".p2align 6
.amdhsa_kernel {name}
  .amdhsa_next_free_vgpr {vgpr}
  .amdhsa_next_free_sgpr {sgpr}
  .amdhsa_accum_offset {(vgpr+3)//4*4}
  .amdhsa_group_segment_fixed_size 0
  .amdhsa_kernarg_size 88
  .amdhsa_user_sgpr_count 2
  .amdhsa_user_sgpr_kernarg_segment_ptr 1
  .amdhsa_system_sgpr_workgroup_id_x 1
  .amdhsa_float_denorm_mode_32 3
.end_amdhsa_kernel"""

WS_DIAG=0x1300000
DIAG=False
class Stamps:
    def __init__(self,A,on): self.A=A; self.on=on; self.n=0
    def mark(self,clk=None):
        if not self.on: return
        i=self.n; self.n+=1
        assert i<12
        self.A(f"s_memrealtime s[100:101]")
        self.A("s_waitcnt lgkmcnt(0)")
        self.A(f"s_mov_b32 s{84+i}, s100")
        if clk is not None:
            self.A(f"s_memtime s[100:101]")
            self.A("s_waitcnt lgkmcnt(0)")
            self.A(f"s_mov_b32 s{96+clk}, s100")
    def dump(self,kidx,ws_lo,ws_hi):
        if not self.on: return
        A=self.A
        A(f"s_add_u32 s56, s{ws_lo}, {WS_DIAG+kidx*256*8*64:#x}")
        A(f"s_addc_u32 s57, s{ws_hi}, 0")
        A("s_lshl_b32 s58, s2, 3")
        A("s_add_u32 s58, s58, s3")
        A("s_lshl_b32 s58, s58, 6")
        A("s_mov_b64 exec, 1")
        A(f"v_mov_b32 v2, s58")
        for i in list(range(self.n))+[12,13]:
            A(f"v_mov_b32 v1, s{84+i}")
            A(f"global_store_dword v2, v1, s[56:57] offset:{4*i}")
            A("s_nop 1")
        A("s_waitcnt vmcnt(0)")
```

```python
from common import *
WS_CS64=0x1100000
WS_FLAGA=0x1190000
WS_WCF2=0x1194000
WS_W2F2=0x11A0000
XL=0; WA=25600; WB=WA+65536; HIST=WB+65536; PRE=HIST+1024
IDT=PRE+1024; IDS=80
CNT=IDT+2688
BINCNT=CNT; BINBASE=CNT+256; NODECNT=CNT+512; GINFO=CNT+1024; OVF=CNT+1056
LDS_TOTAL=CNT+1152
LCAP=2176
LA=34816; LB=LA+LCAP*4; LC=LB+LCAP*4
STG=65536
MAXTOT=1920; DUMMY=31
sX=8; sE=12; sW1=16; sOUT=20; sA=24; sWS=28; sSD=32
sN0=36; sG=37; sHW=38; sSO0=39; sSO1=40; sM0=41; sCNT=42; sC0=43; sSTEP=44; sTOT=45; sMASK=46; sNONCE=47
vAgA=8; vDA=12; vLP0=16; vLP1=17; vLAa=18; vLBa=19; vLCa=20; vLBv=21; vEa=22; vPtA=23
vPTa=24; vH16=28; vPTl=29; vPtB=30; vC80=31
vT=40; vH=56; vPT=64; vPt=72; vEc=80; vEn=84; vAg=88; vSel=104; vWc=112; vBn=128; vZ=160; vS=192
ABL=set()

class Loop:
    def __init__(self,A): self.A=A; self.q=[]
    def ds(self,text,tag): self.A(text); self.q.append(tag)
    def wait(self,tag):
        idx=max(i for i,t in enumerate(self.q) if t==tag)
        self.A(f"s_waitcnt lgkmcnt({min(len(self.q)-1-idx,15)})")

def mfma(d,a,b,c=None):
    cs="0" if c is None else f"v[{c}:{c+15}]"
    return f"v_mfma_f32_32x32x16_bf16 v[{d}:{d+15}], v[{a}:{a+3}], v[{b}:{b+3}], {cs}"

def silu_stream(z):
    o=[]
    if 'novalu' in ABL: return ['s_nop 0']*72
    for hb in range(2):
        b=8*hb
        o+=[f"v_exp_f32 v{vT+b+i}, v{z+b+i}" for i in range(8)]
        o+=[f"v_add_f32 v{vT+b+i}, 1.0, v{vT+b+i}" for i in range(8)]
        o+=[f"v_rcp_f32 v{vT+b+i}, v{vT+b+i}" for i in range(8)]
        o+=[f"v_mul_f32 v{vT+b+i}, v{vT+b+i}, v{z+b+i}" for i in range(8)]
        o+=[f"v_cvt_pk_bf16_f32 v{vH+4*hb+i}, v{vT+b+2*i}, v{vT+b+2*i+1}" for i in range(4)]
    return o
def dma(A,slot,so,i):
    A(f"s_add_u32 m0, s{sM0}, {slot*4096+i*1024}")
    A("s_nop 0")
    A(f"buffer_load_dwordx4 v{vDA+i}, s[{sA}:{sA+3}], s{so} offen sc1 lds")
def zq(kn):
    z=vZ+16*(kn&1)
    return [mfma(z,vEc,vWc+4*kn), mfma(z,vPt,vBn+8*kn,z), mfma(z,vPt+4,vBn+8*kn+4,z),
            mfma(z,vAg+8*(kn&1),vSel,z), mfma(z,vAg+8*(kn&1)+4,vSel+4,z)]
def ag_reads(L,slot):
    for q in range(4):
        L.ds(f"ds_read_b128 v[{vAg+4*q}:{vAg+4*q+3}], v{vAgA+q} offset:{slot*4096}","Ag")
def da_add(A):
    for i in range(4): A(f"v_add_u32 v{vDA+i}, v{vDA+i}, v{vLP0+(i&1)}")
def lb_decode(A):
    A(f"v_and_or_b32 v{vEa}, v{vLBv}, s{sMASK}, v{vH16}")
    A(f"v_bfe_u32 v{vLBv}, v{vLBv}, 24, 5")
    A(f"v_mad_u32_u24 v{vPtA}, v{vLBv}, v{vC80}, v{vPtB}")
def pt_reads(L):
    L.ds(f"ds_read_b128 v[{vPt}:{vPt+3}], v{vPtA}","Pt")
    L.ds(f"ds_read_b128 v[{vPt+4}:{vPt+7}], v{vPtA} offset:32","Pt")
def e_load(A): A(f"buffer_load_dwordx4 v[{vEn}:{vEn+3}], v{vEa}, s[{sE}:{sE+3}], 0 offen")
def e_mov(A):
    for i in range(4): A(f"v_mov_b32 v{vEc+i}, v{vEn+i}")
def pta_add(A):
    for i in range(4): A(f"v_add_u32 v{vPTa+i}, v{vPTa+i}, v{vPTl}")

def nstep(A,L,k):
    z=vZ+16*(k&1); kn=(k+1)&3; kp=(k-1)&3
    val=silu_stream(z); mz=zq(kn)
    seg2=mfma(vS+16*kp,vH+4,vPT+4,vS+16*kp)
    seg1=mfma(vS+16*k,vH,vPT,vS+16*k)
    ev={}
    def at(p,f): ev.setdefault(p,[]).append(f)
    if k==0:
        def f0():
            L.ds(f"ds_read_b64_tr_b16 v[{vPT}:{vPT+1}], v{vPTa}","PT0")
            L.ds(f"ds_read_b64_tr_b16 v[{vPT+2}:{vPT+3}], v{vPTa+1}","PT0")
            A(seg2)
            L.ds(f"ds_read_b64_tr_b16 v[{vPT+4}:{vPT+5}], v{vPTa+2}","PT1")
            L.ds(f"ds_read_b64_tr_b16 v[{vPT+6}:{vPT+7}], v{vPTa+3}","PT1")
        at(0,f0)
    if k==1:
        def f0():
            A("s_waitcnt vmcnt(5)"); ag_reads(L,1); L.wait("PT1"); A(seg2)
        at(0,f0)
        at(16,lambda: L.wait("Ag"))
        for i in range(4): at(16+2*i,(lambda i=i: dma(A,1,sSO1,i)))
        at(26,lambda: L.ds(f"ds_read_b128 v[{vDA}:{vDA+3}], v{vLAa}","LA"))
    if k==2:
        def f0():
            L.wait("LA"); da_add(A); A(seg2)
        at(0,f0)
        def f24():
            pt_reads(L); L.ds(f"ds_read_b32 v{vLBv}, v{vLBa}","LB")
        at(24,f24)
        at(40,lambda: (L.wait("LB"), lb_decode(A)))
    if k==3:
        def f0():
            A("s_waitcnt vmcnt(4)"); ag_reads(L,0); e_mov(A); A(seg2)
        at(0,f0)
        at(6,lambda: L.wait("Pt"))
        at(16,lambda: L.wait("Ag"))
        for i in range(4): at(16+2*i,(lambda i=i: dma(A,0,sSO0,i)))
        at(24,lambda: e_load(A))
        at(26,lambda: L.ds(f"ds_read_b128 v[{vPTa}:{vPTa+3}], v{vLCa}","LC"))
        def f42():
            L.wait("LC"); pta_add(A)
            for r in (vLAa,vLBa,vLCa): A(f"v_add_u32 v{r}, 128, v{r}")
        at(42,f42)
    for p,m in zip((6,14,22,30,38),mz): at(p,(lambda m=m: A(m)))
    if k==0: at(46,lambda: L.wait("PT0"))
    at(46,lambda: A(seg1))
    for i,v in enumerate(val):
        for f in ev.get(i,[]): f()
        A(v)

SDWA="dst_sel:DWORD dst_unused:UNUSED_PAD src0_sel:DWORD src1_sel:"
def gen_fused(diag=False):
    A=Asm(); T=Stamps(A,diag)
    name=KNAME+"_kernel"
    A(f".globl {name}\n.p2align 8\n.type {name},@function")
    A.label(name)
    A("s_cmp_ge_u32 s2, 256")
    A("s_cbranch_scc1 F_END")
    A("s_load_dwordx16 s[64:79], s[0:1], 0")
    A("s_load_dwordx4 s[80:83], s[0:1], 64")
    A("s_load_dwordx2 s[60:61], s[0:1], 80")
    A("v_and_b32 v1, 63, v0")
    A("v_lshrrev_b32 v2, 6, v0")
    A("v_and_b32 v7, 31, v1")
    A("v_readfirstlane_b32 s3, v2")
    A("v_lshrrev_b32 v6, 5, v1")
    A(f"s_mul_i32 s{sN0}, s2, {NPW}")
    A("s_waitcnt lgkmcnt(0)")
    T.mark(0)
    srd(A,sSD,70,71,E*4)
    A(f"s_mul_i32 s48, s2, {CH*4}")
    A("v_lshlrev_b32 v3, 4, v0")
    A("v_add_u32 v3, s48, v3")
    A(f"buffer_load_dwordx4 v[64:67], v3, s[{sSD}:{sSD+3}], 0 offen")
    srd(A,sX,68,69,E*4)
    A(f"buffer_load_dwordx4 v[68:71], v3, s[{sX}:{sX+3}], 0 offen")
    srd(A,sX,64,65,N*256)
    srd(A,sW1,72,73,272*512)
    srd(A,sWS,60,61,WS_END)
    A("s_cmp_lg_u32 s2, 0")
    A("s_cbranch_scc1 F_NN")
    A("s_cmp_lg_u32 s3, 0")
    A("s_cbranch_scc1 F_NN")
    A("s_memrealtime s[48:49]")
    A("s_waitcnt lgkmcnt(0)")
    A("s_or_b32 s48, s48, 1")
    A("v_mov_b32 v4, s48")
    A("v_mov_b32 v5, 0")
    A("s_mov_b64 exec, 1")
    A("global_store_dword v5, v4, s[82:83] sc1")
    A("s_mov_b64 exec, -1")
    A.label("F_NN")
    A("v_lshrrev_b32 v32, 4, v1")
    A("v_and_b32 v33, 15, v1")
    A("v_xor_b32 v33, v33, v32")
    A("s_and_b32 s48, s3, 3")
    A("s_lshl_b32 s48, s48, 2")
    A("v_xor_b32 v33, s48, v33")
    A("v_lshlrev_b32 v33, 4, v33")
    A(f"v_add_u32 v34, s{sN0}, v32")
    A("v_lshl_add_u32 v33, v34, 8, v33")
    A("s_lshl_b32 s49, s3, 10")
    for m in range(3):
        A(f"s_add_u32 s50, s49, {m*8192}")
        A(f"s_add_u32 m0, s50, {XL}")
        A.nop(1)
        A(f"buffer_load_dwordx4 v33, s[{sX}:{sX+3}], s50 offen lds")
    A("s_cmp_lg_u32 s3, 0")
    A("s_cbranch_scc1 F_X4")
    A(f"s_mov_b32 s50, {24*1024}")
    A(f"s_mov_b32 m0, {XL+24*1024}")
    A.nop(1)
    A(f"buffer_load_dwordx4 v33, s[{sX}:{sX+3}], s50 offen lds")
    A.label("F_X4")
    A("v_lshlrev_b32 v34, 2, v6")
    A("v_xor_b32 v34, v34, v7")
    A("v_lshlrev_b32 v34, 4, v34")
    A("v_lshl_add_u32 v34, v6, 9, v34")
    A("v_xor_b32 v35, 128, v34")
    A("v_xor_b32 v36, v6, v7")
    A("v_lshlrev_b32 v36, 4, v36")
    A("v_lshl_add_u32 v36, v6, 9, v36")
    A("v_xor_b32 v37, 32, v36")
    A("s_lshl_b32 s49, s3, 13")
    for ii in range(8):
        A(f"s_add_u32 s50, s49, {ii*1024}")
        A(f"s_add_u32 m0, s50, {WA}")
        A.nop(1)
        A(f"buffer_load_dwordx4 v{34+(ii&1)}, s[{sW1}:{sW1+3}], s50 offen lds")
    for ii in range(8):
        A(f"s_add_u32 s50, s49, {65536+ii*1024}")
        A(f"s_add_u32 m0, s50, {WB-65536}")
        A.nop(1)
        A(f"buffer_load_dwordx4 v{36+(ii&1)}, s[{sW1}:{sW1+3}], s50 offen lds")
    A(f"s_lshr_b32 s{sG}, s3, 1")
    A(f"s_and_b32 s{sHW}, s3, 1")
    srd(A,sSD,74,75,512)
    A("v_lshrrev_b32 v38, 3, v7")
    A("v_lshlrev_b32 v38, 6, v38")
    A("v_and_b32 v39, 7, v7")
    A("v_lshl_add_u32 v38, v39, 1, v38")
    A(f"s_lshl_b32 s48, s{sHW}, 8")
    for k in range(4):
        A(f"buffer_load_ushort v{96+k}, v38, s[{sSD}:{sSD+3}], s48 offen offset:{16*k}")
    A("s_cmp_ge_u32 s2, 36")
    A("s_cbranch_scc1 F_NOPREP")
    A("v_lshrrev_b32 v40, 2, v0")
    A("v_and_b32 v40, 63, v40")
    A("v_and_b32 v41, 3, v0")
    A("v_lshrrev_b32 v42, 8, v0")
    A("v_and_b32 v43, 31, v40")
    A("v_lshrrev_b32 v44, 5, v40")
    A("s_cmp_ge_u32 s2, 4")
    A("s_cbranch_scc1 F_PW2")
    A("s_lshl_b32 s48, s2, 1")
    A("v_add_u32 v45, s48, v42")
    A("v_lshrrev_b32 v46, 2, v45")
    A("v_lshlrev_b32 v46, 7, v46")
    A("v_and_b32 v45, 3, v45")
    A("v_lshl_add_u32 v46, v45, 3, v46")
    A("v_lshrrev_b32 v45, 3, v43")
    A("v_lshl_add_u32 v46, v45, 5, v46")
    A("v_and_b32 v45, 7, v43")
    A("v_add_u32 v46, v46, v45")
    A("v_lshlrev_b32 v45, 3, v44")
    A("v_lshl_add_u32 v45, v41, 1, v45")
    A("v_add_u32 v45, 256, v45")
    A("v_lshlrev_b32 v45, 9, v45")
    A("v_lshl_add_u32 v45, v46, 1, v45")
    A(f"buffer_load_ushort v100, v45, s[{sW1}:{sW1+3}], 0 offen")
    A(f"buffer_load_ushort v101, v45, s[{sW1}:{sW1+3}], 0 offen offset:512")
    A("s_branch F_NOPREP")
    A.label("F_PW2")
    srd(A,sSD,76,77,256*256)
    A("s_sub_u32 s48, s2, 4")
    A("s_lshl_b32 s48, s48, 1")
    A("v_add_u32 v45, s48, v42")
    A("v_bfe_u32 v46, v45, 3, 1")
    A("v_lshlrev_b32 v46, 7, v46")
    A("v_bfe_u32 v47, v45, 1, 2")
    A("v_lshl_add_u32 v46, v47, 3, v46")
    A("v_and_b32 v47, 1, v45")
    A("v_lshlrev_b32 v47, 1, v47")
    A("v_lshrrev_b32 v48, 1, v41")
    A("v_add_u32 v47, v47, v48")
    A("v_lshl_add_u32 v46, v47, 5, v46")
    A("v_lshl_add_u32 v46, v44, 2, v46")
    A("v_and_b32 v47, 1, v41")
    A("v_lshl_add_u32 v46, v47, 1, v46")
    A("v_lshrrev_b32 v47, 4, v45")
    A("v_lshl_add_u32 v47, v47, 5, v43")
    A("v_lshlrev_b32 v46, 8, v46")
    A("v_lshl_add_u32 v46, v47, 1, v46")
    A(f"buffer_load_ushort v100, v46, s[{sSD}:{sSD+3}], 0 offen")
    A(f"buffer_load_ushort v101, v46, s[{sSD}:{sSD+3}], 0 offen offset:256")
    A.label("F_NOPREP")
    A("v_mov_b32 v37, 0")
    A("v_lshlrev_b32 v38, 2, v0")
    A(f"v_add_u32 v38, {HIST}, v38")
    A("v_cmp_gt_u32 vcc, 256, v0")
    A("s_and_saveexec_b64 s[50:51], vcc")
    A("ds_write_b32 v38, v37")
    A("s_mov_b64 exec, s[50:51]")
    for rnd in range(2):
        A(f"v_add_u32 v39, {512*rnd}, v0")
        A("v_mul_u32_u24 v40, 3277, v39")
        A("v_lshrrev_b32 v40, 16, v40")
        A("v_mul_u32_u24 v41, 20, v40")
        A("v_sub_u32 v41, v39, v41")
        A("v_lshlrev_b32 v41, 1, v41")
        A("v_sub_u32 v41, v40, v41")
        A("v_lshlrev_b32 v42, 4, v41")
        A("v_mov_b32 v43, 0x3f80")
        A("v_lshlrev_b32 v43, v42, v43")
        A("v_cmp_gt_u32 vcc, 2, v41")
        A(f"v_cmp_gt_u32 s[52:53], {DUMMY}, v40")
        A.nop(2)
        A("s_and_b64 vcc, vcc, s[52:53]")
        A.nop(2)
        A("v_cndmask_b32 v42, 0, v43, vcc")
        A("v_lshlrev_b32 v41, 2, v39")
        A(f"v_add_u32 v41, {IDT}, v41")
        A("v_cmp_gt_u32 vcc, 660, v39")
        A("s_and_saveexec_b64 s[50:51], vcc")
        A("ds_write_b32 v41, v42")
        A("s_mov_b64 exec, s[50:51]")
    A(f"v_lshlrev_b32 v{vH16}, 4, v6")
    A(f"v_add_u32 v{vPtB}, {IDT}, v{vH16}")
    A(f"v_mov_b32 v{vC80}, {IDS}")
    A("v_bfe_u32 v45, v1, 4, 1")
    A("v_lshlrev_b32 v45, 5, v45")
    A("v_and_b32 v46, 3, v1")
    A("v_lshl_add_u32 v45, v46, 3, v45")
    A(f"v_add_u32 v{vPTl}, {IDT}, v45")
    A("v_and_b32 v45, 7, v1")
    A("v_lshrrev_b32 v46, 4, v1")
    A("v_xor_b32 v45, v45, v46")
    A(f"v_lshlrev_b32 v{vLP0}, 4, v45")
    A(f"v_xor_b32 v{vLP1}, 64, v{vLP0}")
    A(f"s_lshl_b32 s{sM0}, s3, 13")
    A(f"s_add_u32 s{sM0}, s{sM0}, {STG}")
    A("v_bfe_u32 v45, v7, 1, 3")
    A("v_xor_b32 v45, v45, v6")
    A("v_lshlrev_b32 v45, 4, v45")
    A("v_lshl_add_u32 v45, v7, 7, v45")
    A(f"v_add_u32 v45, s{sM0}, v45")
    for q in range(4): A(f"v_xor_b32 v{vAgA+q}, {32*q}, v45")
    for qq in range(2):
        A("v_lshlrev_b32 v45, 1, v6")
        A("v_sub_u32 v45, v7, v45")
        A(f"v_subrev_u32 v45, {4*qq}, v45")
        for i in range(4):
            t0=8*((2*i)&3)+((2*i)>>2); t1=8*((2*i+1)&3)+((2*i+1)>>2)
            A(f"v_cmp_eq_u32 vcc, {t0}, v45")
            A(f"v_cmp_eq_u32 s[52:53], {t1}, v45")
            A("v_mov_b32 v46, 0x3f80")
            A("v_mov_b32 v47, 0x3f800000")
            A("v_cndmask_b32 v46, 0, v46, vcc")
            A("v_cndmask_b32 v47, 0, v47, s[52:53]")
            A(f"v_or_b32 v{vSel+4*qq+i}, v46, v47")
    A(f"s_lshl_b32 s{sSO0}, s{sHW}, 8")
    A(f"s_add_u32 s{sSO1}, s{sSO0}, 128")
    A(f"s_mov_b32 s{sMASK}, 0x00ffffff")
    srd(A,sE,66,67,E*32)
    srd(A,sOUT,80,81,N*256)
    srd(A,sA,60,61,N*512)
    A("s_waitcnt lgkmcnt(0)")
    A("s_barrier")
    A(f"s_mul_i32 s54, s2, {CH}")
    A(f"s_sub_u32 s55, {E}, s54")
    A(f"s_min_u32 s55, s55, {CH}")
    A("v_lshlrev_b32 v50, 2, v0")
    nyoung = 3+16+4
    A(f"s_waitcnt vmcnt({nyoung})")
    T.mark()
    A("v_cmp_gt_u32 vcc, s55, v50")
    A("s_and_saveexec_b64 s[56:57], vcc")
    A("s_mov_b64 s[58:59], exec")
    A("s_cbranch_execz F_A")
    A("s_mov_b32 s48, 42800")
    A("v_mov_b32 v51, 1")
    A("v_add_u32 v52, s54, v50")
    for k in range(4):
        d=64+k; s=68+k; b=72+k
        A(f"v_mul_u32_u24 v{b}, s48, v{d}")
        A(f"v_lshrrev_b32 v{b}, 22, v{b}")
        A(f"v_lshlrev_b32 v53, 2, v{b}")
        A(f"v_add_u32 v53, {HIST}, v53")
        A(f"ds_add_rtn_u32 v{76+k}, v53, v51")
        A(f"v_mul_u32_u24 v53, {NPW}, v{b}")
        A(f"v_sub_u32 v53, v{d}, v53")
        A("v_mul_u32_u24 v54, 41, v53")
        A("v_lshrrev_b32 v54, 10, v54")
        A("v_mul_u32_u24 v55, 7, v54")
        A("v_add_u32 v53, v53, v55")
        A(f"v_mul_u32_u24 v55, 335, v{s}")
        A("v_lshrrev_b32 v55, 19, v55")
        A("v_lshl_add_u32 v55, v54, 4, v55")
        A(f"v_lshlrev_b32 v{80+2*k}, 9, v{s}")
        A(f"v_lshl_or_b32 v{80+2*k}, v53, 24, v{80+2*k}")
        A(f"v_add_u32 v54, {k}, v52")
        A("v_lshlrev_b32 v54, 5, v54")
        A(f"v_lshl_or_b32 v{81+2*k}, v55, 24, v54")
    A.label("F_A")
    A("s_mov_b64 exec, s[56:57]")
    A("s_waitcnt lgkmcnt(0)")
    A("s_barrier")
    A("s_cmp_lg_u32 s3, 0")
    A("s_cbranch_scc1 F_B")
    A("v_lshlrev_b32 v52, 4, v1")
    A(f"v_add_u32 v52, {HIST}, v52")
    A("ds_read_b128 v[88:91], v52")
    A("s_waitcnt lgkmcnt(0)")
    A("v_add_u32 v53, v88, v89")
    A("v_add_u32 v54, v53, v90")
    A("v_add_u32 v55, v54, v91")
    A("v_mov_b32 v56, v55")
    for sh in (1,2,4,8):
        A.nop(2)
        A(f"v_add_u32_dpp v56, v56, v56 row_shr:{sh} row_mask:0xf bank_mask:0xf bound_ctrl:0")
    A.nop(2)
    A("v_add_u32_dpp v56, v56, v56 row_bcast:15 row_mask:0xa bank_mask:0xf")
    A.nop(2)
    A("v_add_u32_dpp v56, v56, v56 row_bcast:31 row_mask:0xc bank_mask:0xf")
    A("v_sub_u32 v92, v56, v55")
    A("v_add_u32 v93, v92, v88")
    A("v_add_u32 v94, v92, v53")
    A("v_add_u32 v95, v92, v54")
    A("ds_write_b128 v52, v[92:95] offset:1024")
    for k in range(4): A(f"v_lshl_or_b32 v{88+k}, v{88+k}, 16, v{92+k}")
    A.label("F_B")
    A("s_waitcnt vmcnt(0) lgkmcnt(0)")
    A("s_barrier")
    T.mark()
    A("s_mov_b64 exec, s[58:59]")
    A("s_cbranch_execz F_C")
    for k in range(4):
        A(f"v_lshlrev_b32 v53, 2, v{72+k}")
        A(f"v_add_u32 v53, {PRE}, v53")
        A(f"ds_read_b32 v{72+k}, v53")
    A(f"s_mul_i32 s48, s2, {CH*8}")
    A(f"s_add_u32 s48, s48, {WS_REC:#x}")
    A("s_waitcnt lgkmcnt(0)")
    for k in range(4):
        A(f"v_add_lshl_u32 v{72+k}, v{72+k}, v{76+k}, 3")
        A(f"buffer_store_dwordx2 v[{80+2*k}:{81+2*k}], v{72+k}, s[{sWS}:{sWS+3}], s48 offen sc1")
    A.label("F_C")
    A("s_mov_b64 exec, s[56:57]")
    A("s_cmp_lg_u32 s3, 0")
    A("s_cbranch_scc1 F_D")
    A("v_mov_b32 v103, 0")
    A("global_load_dword v102, v103, s[82:83] sc1")
    A.label("F_D")
    A("s_cmp_ge_u32 s2, 36")
    A("s_cbranch_scc1 F_E")
    A("v_lshlrev_b32 v53, 2, v0")
    A("s_cmp_ge_u32 s2, 4")
    A("s_cbranch_scc1 F_E2")
    A(f"s_mov_b32 s48, {f2u(SCALE):#x}")
    A("v_lshlrev_b32 v100, 16, v100")
    A("v_lshlrev_b32 v101, 16, v101")
    A("v_mul_f32 v100, s48, v100")
    A("v_mul_f32 v101, s48, v101")
    A("v_cvt_pk_bf16_f32 v100, v100, v101")
    A("s_lshl_b32 s48, s2, 11")
    A(f"s_add_u32 s48, s48, {WS_WCF2:#x}")
    A(f"buffer_store_dword v100, v53, s[{sWS}:{sWS+3}], s48 offen sc1")
    A("s_branch F_E")
    A.label("F_E2")
    A("v_lshl_or_b32 v100, v101, 16, v100")
    A("s_sub_u32 s48, s2, 4")
    A("s_lshl_b32 s48, s48, 11")
    A(f"s_add_u32 s48, s48, {WS_W2F2:#x}")
    A(f"buffer_store_dword v100, v53, s[{sWS}:{sWS+3}], s48 offen sc1")
    A.label("F_E")
    Xo=32; W0=64; W1=112; acc=144
    for k in range(4): A(f"v_mov_b32 v{240+k}, v{88+k}")
    A("s_and_b32 s48, s3, 3")
    A("s_lshl_b32 s48, s48, 5")
    A("v_add_u32 v52, s48, v7")
    A("v_min_u32 v52, 99, v52")
    A("v_and_b32 v53, 15, v52")
    A("v_xor_b32 v53, v53, v6")
    A("v_lshlrev_b32 v53, 4, v53")
    A("v_lshl_add_u32 v52, v52, 8, v53")
    for s in range(8): A(f"v_xor_b32 v{224+s}, {32*s}, v52")
    for s in range(8): A(f"ds_read_b128 v[{Xo+4*s}:{Xo+4*s+3}], v{224+s}")
    A("v_bfe_u32 v244, v1, 2, 2")
    A("v_lshl_add_u32 v245, v6, 3, v244")
    A("v_lshlrev_b32 v245, 9, v245")
    A("v_bfe_u32 v246, v1, 4, 1")
    A("v_lshl_add_u32 v245, v246, 5, v245")
    A("v_and_b32 v246, 3, v1")
    A("v_lshl_add_u32 v245, v246, 3, v245")
    A("s_lshr_b32 s49, s3, 2")
    A("s_lshl_b32 s49, s49, 8")
    A(f"s_add_u32 s50, s49, {WA}")
    A("v_add_u32 v245, s50, v245")
    for t in range(4):
        A(f"v_xor_b32 v246, {t}, v244")
        A(f"v_lshl_add_u32 v{248+t}, v246, 6, v245")
    def wreads(buf,addr):
        for s in range(8):
            for jj in range(2):
                A(f"ds_read_b64_tr_b16 v[{buf+4*s+2*jj}:{buf+4*s+2*jj+1}], v{addr} offset:{s*8192+jj*2048}")
    bufs=[W0,W1]
    wreads(W0,248)
    for t in range(4):
        A("s_waitcnt lgkmcnt(0)")
        if t<3: wreads(bufs[(t+1)&1],248+t+1)
        for s in range(8):
            A(mfma(acc+16*t,Xo+4*s,bufs[t&1]+4*s,None if s==0 else acc+16*t))
    A("s_waitcnt vmcnt(0)")
    A("s_barrier")
    T.mark()
    A("s_cmp_lg_u32 s3, 0")
    A("s_cbranch_scc1 F_F")
    A("s_mov_b32 s52, 0")
    A.label("F_NP")
    A(f"v_readfirstlane_b32 s{sNONCE}, v102")
    A.nop(4)
    A(f"s_cmp_lg_u32 s{sNONCE}, 0")
    A("s_cbranch_scc1 F_NOK")
    A("s_add_u32 s52, s52, 1")
    A("s_cmp_gt_u32 s52, 0x4000")
    A("s_cbranch_scc1 F_NOK")
    A("v_mov_b32 v103, 0")
    A("global_load_dword v102, v103, s[82:83] sc1")
    A("s_waitcnt vmcnt(0)")
    A("s_branch F_NP")
    A.label("F_NOK")
    A("v_lshlrev_b32 v52, 13, v1")
    A("s_lshl_b32 s48, s2, 3")
    A(f"s_add_u32 s48, s48, {WS_CS64:#x}")
    A(f"v_mov_b32 v245, s{sNONCE}")
    for k in range(4):
        A(f"v_mov_b32 v244, v{240+k}")
        A(f"buffer_store_dwordx2 v[244:245], v52, s[{sWS}:{sWS+3}], s48 offen sc1")
        A("s_add_u32 s48, s48, 2048")
        A.nop(2)
    A.label("F_F")
    A(f"s_add_u32 s48, s{sN0}, {NPW}")
    A(f"s_min_u32 s48, s48, {N}")
    A("s_lshl_b32 s48, s48, 9")
    A(f"s_mov_b32 s{sSD}, s60\ns_mov_b32 s{sSD+1}, s61\ns_mov_b32 s{sSD+2}, s48\ns_mov_b32 s{sSD+3}, 0x00020000")
    A("s_and_b32 s50, s3, 3")
    A("s_lshl_b32 s50, s50, 5")
    A(f"s_add_u32 s50, s50, s{sN0}")
    A("v_lshlrev_b32 v52, 2, v6")
    A("v_add_u32 v52, s50, v52")
    A("v_lshlrev_b32 v52, 9, v52")
    A("v_lshl_add_u32 v52, v7, 3, v52")
    A("v_add_u32 v52, s49, v52")
    A(f"s_mov_b32 s51, {f2u(SCALE):#x}")
    A.nop(8)
    for r in range(16):
        for t in range(4): A(f"v_mul_f32 v{acc+16*t+r}, s51, v{acc+16*t+r}")
        p=64+2*(r&7)
        A(f"v_cvt_pk_bf16_f32 v{p}, v{acc+r}, v{acc+16+r}")
        A(f"v_cvt_pk_bf16_f32 v{p+1}, v{acc+32+r}, v{acc+48+r}")
        A(f"s_mov_b32 s52, {((r>>2)*8+(r&3))*512}")
        A(f"buffer_store_dwordx2 v[{p}:{p+1}], v52, s[{sSD}:{sSD+3}], s52 offen sc1")
    A("v_and_b32 v52, 0x13, v7")
    A("v_and_b32 v53, 4, v7")
    A("v_lshlrev_b32 v53, 1, v53")
    A("v_bfe_u32 v54, v7, 3, 1")
    A("v_lshlrev_b32 v54, 2, v54")
    A("v_or3_b32 v52, v52, v53, v54")
    A(f"s_mul_i32 s50, s{sG}, 25")
    A("v_add_u32 v52, s50, v52")
    A("v_min_u32 v52, 97, v52")
    A("v_and_b32 v53, 15, v52")
    A("v_xor_b32 v53, v53, v6")
    A("v_lshlrev_b32 v53, 4, v53")
    A("v_lshl_add_u32 v52, v52, 8, v53")
    for s in range(8): A(f"v_xor_b32 v{112+s}, {32*s}, v52")
    for s in range(8): A(f"ds_read_b128 v[{Xo+4*s}:{Xo+4*s+3}], v{112+s}")
    A("v_bfe_u32 v244, v1, 2, 2")
    A("v_lshl_add_u32 v245, v6, 3, v244")
    A("v_lshlrev_b32 v245, 9, v245")
    A("v_bfe_u32 v246, v1, 4, 1")
    A("v_lshl_add_u32 v245, v246, 7, v245")
    A("v_bfe_u32 v246, v1, 1, 1")
    A("v_lshl_add_u32 v245, v246, 6, v245")
    A("v_and_b32 v246, 1, v1")
    A("v_lshl_add_u32 v245, v246, 3, v245")
    A(f"s_add_u32 s50, s{sSO0}, {WB}")
    A("v_add_u32 v245, s50, v245")
    for k in range(4):
        A(f"v_xor_b32 v246, {k}, v244")
        A(f"v_lshl_add_u32 v{248+k}, v246, 4, v245")
    B0=64; B1=160; accb=[208,224]
    bufs=[B0,B1]
    wreads(B0,248)
    A(f"s_mov_b32 s51, {f2u(SCALE):#x}")
    def bn_finish(k):
        a=accb[k&1]
        A(f"v_lshlrev_b32 v{96+k}, 16, v{96+k}")
        for r in range(16):
            A(f"v_add_f32 v{a+r}, v{a+r}, v{96+k}")
            A(f"v_mul_f32 v{a+r}, s51, v{a+r}")
        for i in range(8): A(f"v_cvt_pk_bf16_f32 v{vBn+8*k+i}, v{a+2*i}, v{a+2*i+1}")
    for k in range(4):
        A("s_waitcnt lgkmcnt(0)")
        if k<3: wreads(bufs[(k+1)&1],248+k+1)
        for s in range(8):
            A(mfma(accb[k&1],Xo+4*s,bufs[k&1]+4*s,None if s==0 else accb[k&1]))
        if k>0: bn_finish(k-1)
    A.nop(16)
    bn_finish(3)
    for i in range(64): A(f"v_mov_b32 v{vS+i}, 0")
    A(f"s_mov_b32 s{sC0}, 0")
    A(f"s_mov_b32 s{sSTEP}, 256")
    A("s_mov_b32 s62, 0")
    A("s_barrier")
    T.mark(1)
    A("v_mov_b32 v48, 0")
    A("v_lshlrev_b32 v47, 2, v0")
    A(f"v_add_u32 v47, {NODECNT}, v47")
    A("v_cmp_gt_u32 vcc, 128, v0")
    A("s_and_saveexec_b64 s[50:51], vcc")
    A("ds_write_b32 v47, v48")
    A("s_mov_b64 exec, s[50:51]")
    A.label("F_BATCH")
    A("v_mov_b32 v48, 0\nv_mov_b32 v49, 0\nv_mov_b32 v50, 0\nv_mov_b32 v51, 0")
    dm=DUMMY<<24
    A(f"v_mov_b32 v52, {dm:#x}\nv_mov_b32 v53, {dm:#x}\nv_mov_b32 v54, {dm:#x}\nv_mov_b32 v55, {dm:#x}")
    A(f"v_mov_b32 v56, {DUMMY*IDS}\nv_mov_b32 v57, {DUMMY*IDS}\nv_mov_b32 v58, {DUMMY*IDS}\nv_mov_b32 v59, {DUMMY*IDS}")
    A("v_lshlrev_b32 v45, 4, v0")
    A(f"v_add_u32 v46, {LA}, v45")
    A("ds_write_b128 v46, v[48:51]")
    A(f"ds_write_b128 v46, v[52:55] offset:{LB-LA}")
    A(f"ds_write_b128 v46, v[56:59] offset:{LC-LA}")
    A("v_cmp_gt_u32 vcc, 32, v0")
    A("s_and_saveexec_b64 s[50:51], vcc")
    A("ds_write_b128 v46, v[48:51] offset:8192")
    A(f"ds_write_b128 v46, v[52:55] offset:{LB-LA+8192}")
    A(f"ds_write_b128 v46, v[56:59] offset:{LC-LA+8192}")
    A("v_lshlrev_b32 v47, 2, v0")
    A(f"v_add_u32 v47, {BINCNT}, v47")
    A("ds_write_b32 v47, v48")
    A("ds_write_b32 v47, v48 offset:128")
    A(f"ds_write_b32 v47, v48 offset:{GINFO-BINCNT}")
    A("s_mov_b64 exec, s[50:51]")
    A("v_lshrrev_b32 v60, 1, v0")
    A(f"s_cmp_eq_u32 s{sSTEP}, 1")
    A("s_cbranch_scc0 F_CF")
    A(f"v_mov_b32 v60, s{sC0}")
    A.label("F_CF")
    A("v_lshlrev_b32 v61, 3, v60")
    A("s_lshl_b32 s48, s2, 11")
    A(f"s_add_u32 s48, s48, {WS_CS64:#x}")
    A("s_mov_b32 s52, 0")
    A("v_mov_b32 v103, 0")
    A.label("F_POLL")
    A(f"buffer_load_dwordx2 v[62:63], v61, s[{sWS}:{sWS+3}], s48 offen sc1")
    A("global_load_dword v102, v103, s[82:83] sc1")
    A("s_waitcnt vmcnt(0) lgkmcnt(0)")
    A("s_cmp_lg_u32 s62, 0")
    A("s_cbranch_scc1 F_FLAGGED")
    A("s_mov_b32 s62, 1")
    A("s_barrier")
    A("s_cmp_lg_u32 s3, 0")
    A("s_cbranch_scc1 F_FLAGGED")
    A(f"v_mov_b32 v64, s{sNONCE}")
    A("s_lshl_b32 s49, s2, 2")
    A(f"s_add_u32 s49, s49, {WS_FLAGA:#x}")
    A("s_mov_b64 exec, 1")
    A(f"buffer_store_dword v64, v103, s[{sWS}:{sWS+3}], s49 offen sc1")
    A("s_mov_b64 exec, -1")
    A.label("F_FLAGGED")
    A(f"v_readfirstlane_b32 s{sNONCE}, v102")
    A.nop(4)
    A(f"v_cmp_ne_u32 vcc, s{sNONCE}, v63")
    A(f"s_cmp_eq_u32 s{sNONCE}, 0")
    A("s_cbranch_scc1 F_POLL2")
    A("s_cbranch_vccz F_POLLED")
    A.label("F_POLL2")
    A("s_add_u32 s52, s52, 1")
    A("s_cmp_gt_u32 s52, 0x4000")
    A("s_cbranch_scc0 F_POLL")
    A.label("F_POLLED")
    T.mark()
    A("v_and_b32 v64, 0xffff, v62")
    A("v_lshrrev_b32 v65, 16, v62")
    A("v_and_b32 v66, 1, v0")
    A(f"s_cmp_eq_u32 s{sSTEP}, 1")
    A("s_cbranch_scc0 F_FAST")
    A("s_barrier")
    A("v_lshrrev_b32 v67, 1, v0")
    A("v_lshlrev_b32 v67, 3, v67")
    A("v_add_u32 v64, v64, v67")
    A("v_sub_u32 v65, v65, v67")
    A("v_max_i32 v65, 0, v65")
    A("v_min_u32 v65, 8, v65")
    A("s_branch F_GO")
    A.label("F_FAST")
    A("v_cmp_lt_u32 vcc, 24, v65")
    A("s_cbranch_vccz F_GO")
    A("v_mov_b32 v67, 1")
    A(f"v_mov_b32 v68, {OVF}")
    A("ds_write_b32 v68, v67")
    A.label("F_GO")
    A(f"v_mul_u32_u24 v67, {CH}, v60")
    A("v_add_u32 v67, v67, v64")
    A("v_lshl_add_u32 v67, v66, 2, v67")
    A("v_lshlrev_b32 v67, 3, v67")
    A(f"s_mov_b32 s48, {WS_REC:#x}")
    R=68
    for it in range(2):
        for h in range(2):
            A(f"buffer_load_dwordx4 v[{R+8*it+4*h}:{R+8*it+4*h+3}], v67, s[{sWS}:{sWS+3}], s48 offen offset:{64*it+16*h} sc1")
    A("v_lshlrev_b32 v66, 2, v66")
    A("v_sub_u32 v65, v65, v66")
    A("v_cmp_lt_i32 vcc, 16, v65")
    A("s_mov_b32 s63, 0")
    A("s_cbranch_vccz F_NO3")
    A("s_mov_b32 s63, 1")
    for h in range(2):
        A(f"buffer_load_dwordx4 v[{R+16+4*h}:{R+16+4*h+3}], v67, s[{sWS}:{sWS+3}], s48 offen offset:{128+16*h} sc1")
    A.label("F_NO3")
    A("v_mov_b32 v64, 1")
    A("s_waitcnt vmcnt(0)")
    def passA(q):
        it,k=q//4,q%4
        w0,w1=R+2*q,R+2*q+1
        A(f"v_cmp_lt_i32 vcc, {8*it+k}, v65")
        A("s_mov_b64 exec, vcc")
        A(f"v_lshlrev_b32_sdwa v66, 2, v{w1} {SDWA}BYTE_3")
        A(f"v_lshlrev_b32_sdwa v67, 2, v{w0} {SDWA}BYTE_3")
        A(f"v_add_u32 v66, {BINCNT}, v66")
        A(f"v_add_u32 v67, {NODECNT}, v67")
        A(f"ds_add_rtn_u32 v{92+q}, v66, v64")
        A(f"ds_add_u32 v67, v64")
        A("s_mov_b64 exec, -1")
    for q in range(8): passA(q)
    A("s_cmp_eq_u32 s63, 0")
    A("s_cbranch_scc1 F_NO3B")
    for q in range(8,12): passA(q)
    A.label("F_NO3B")
    A("s_waitcnt lgkmcnt(0)")
    A("s_barrier")
    T.mark()
    A("s_cmp_lg_u32 s3, 0")
    A("s_cbranch_scc1 F_NOPFX")
    A("v_lshlrev_b32 v60, 2, v1")
    A(f"v_add_u32 v60, {BINCNT}, v60")
    A("ds_read_b32 v61, v60")
    A("s_waitcnt lgkmcnt(0)")
    A("v_mov_b32 v62, v61")
    for sh in (1,2,4,8):
        A.nop(2)
        A(f"v_add_u32_dpp v62, v62, v62 row_shr:{sh} row_mask:0xf bank_mask:0xf bound_ctrl:0")
    A.nop(1)
    for g in range(4): A(f"v_readlane_b32 s{50+g}, v62, {16*g+15}")
    A.nop(4)
    A("s_add_u32 s58, s50, s51\ns_add_u32 s58, s58, s52\ns_add_u32 s58, s58, s53")
    for g in range(4):
        A(f"s_add_u32 s{50+g}, s{50+g}, 31")
        A(f"s_lshr_b32 s{50+g}, s{50+g}, 5")
    A("s_mov_b32 s54, 0\ns_mov_b32 s55, s50\ns_add_u32 s56, s55, s51\ns_add_u32 s57, s56, s52")
    A("v_sub_u32 v62, v62, v61")
    A("v_mov_b32 v63, 0")
    for g in range(1,4):
        A(f"s_lshl_b32 s59, s{54+g}, 5")
        A("v_mov_b32 v66, s59")
        A(f"v_cmp_le_u32 vcc, {16*g}, v1")
        A.nop(2)
        A("v_cndmask_b32 v63, v63, v66, vcc")
    A("v_add_u32 v62, v62, v63")
    A(f"ds_write_b32 v60, v62 offset:{BINBASE-BINCNT}")
    A("s_mov_b64 exec, 1")
    A(f"v_mov_b32 v66, {GINFO}")
    for i in range(8):
        A(f"v_mov_b32 v67, s{50+i}")
        A(f"ds_write_b32 v66, v67 offset:{4*i}")
    A(f"s_cmp_gt_u32 s58, {MAXTOT}")
    A("s_cbranch_scc0 F_NOOVF")
    A("v_mov_b32 v67, 1")
    A(f"ds_write_b32 v66, v67 offset:{OVF-GINFO}")
    A.label("F_NOOVF")
    A("s_mov_b64 exec, -1")
    A.label("F_NOPFX")
    A("s_waitcnt lgkmcnt(0)")
    A("s_barrier")
    A(f"v_mov_b32 v66, {GINFO}")
    A(f"s_lshl_b32 s50, s{sG}, 2")
    A("v_add_u32 v67, s50, v66")
    A(f"ds_read_b32 v60, v66 offset:{OVF-GINFO}")
    A("ds_read_b32 v61, v67")
    A("ds_read_b32 v62, v67 offset:16")
    A("s_waitcnt lgkmcnt(0)")
    A("v_readfirstlane_b32 s50, v60")
    A(f"v_readfirstlane_b32 s{sCNT}, v61")
    A("v_readfirstlane_b32 s51, v62")
    A.nop(4)
    A("s_cmp_eq_u32 s50, 0")
    A("s_cbranch_scc1 F_FIT")
    A(f"s_cmp_eq_u32 s{sSTEP}, 1")
    A("s_cbranch_scc1 F_FIT")
    A(f"s_mov_b32 s{sSTEP}, 1")
    A(f"s_mov_b32 s{sC0}, 0")
    A("s_barrier")
    A("v_mov_b32 v48, 0")
    A("v_lshlrev_b32 v47, 2, v0")
    A(f"v_add_u32 v47, {NODECNT}, v47")
    A("v_cmp_gt_u32 vcc, 128, v0")
    A("s_and_saveexec_b64 s[50:51], vcc")
    A("ds_write_b32 v47, v48")
    A("s_mov_b64 exec, s[50:51]")
    A("s_branch F_BATCH")
    A.label("F_FIT")
    A(f"s_min_u32 s{sCNT}, s{sCNT}, 66")
    A("s_min_u32 s51, s51, 66")
    def passB(qs):
        for q in qs:
            A(f"v_lshlrev_b32_sdwa v66, 2, v{R+2*q+1} {SDWA}BYTE_3")
            A(f"v_add_u32 v66, {BINBASE}, v66")
            A(f"ds_read_b32 v{40+q}, v66")
        A("s_waitcnt lgkmcnt(0)")
        for q in qs:
            it,k=q//4,q%4
            w0,w1=R+2*q,R+2*q+1
            A(f"v_cmp_lt_i32 vcc, {8*it+k}, v65")
            A("s_mov_b64 exec, vcc")
            A(f"v_add_lshl_u32 v66, v{40+q}, v{92+q}, 2")
            A(f"v_add_u32 v66, {LA}, v66")
            A(f"v_bfi_b32 v67, s{sMASK}, v{w1}, v{w0}")
            A(f"v_bfe_u32 v60, v{w0}, 24, 5")
            A(f"v_mul_u32_u24 v60, {IDS}, v60")
            A(f"v_and_b32 v{w0}, s{sMASK}, v{w0}")
            if 'nogather' in ABL: A(f"v_mov_b32 v{w0}, 0")
            A(f"ds_write_b32 v66, v{w0}")
            A(f"ds_write_b32 v66, v67 offset:{LB-LA}")
            A(f"ds_write_b32 v66, v60 offset:{LC-LA}")
            A("s_mov_b64 exec, -1")
    passB(range(8))
    A("s_cmp_eq_u32 s63, 0")
    A("s_cbranch_scc1 F_NO3C")
    passB(range(8,12))
    A.label("F_NO3C")
    A("s_cmp_eq_u32 s62, 2")
    A("s_cbranch_scc1 F_AOK")
    A("s_mov_b32 s62, 2")
    A("v_lshlrev_b32 v60, 2, v1")
    A("s_and_b32 s52, s3, 3")
    A("s_lshl_b32 s52, s52, 8")
    A(f"s_add_u32 s52, s52, {WS_FLAGA:#x}")
    A("s_mov_b32 s53, 0")
    A.label("F_APOLL")
    A(f"buffer_load_dword v61, v60, s[{sWS}:{sWS+3}], s52 offen sc1")
    A("s_waitcnt vmcnt(0)")
    A(f"v_cmp_ne_u32 vcc, s{sNONCE}, v61")
    A("s_cbranch_vccz F_APOLLED")
    A("s_add_u32 s53, s53, 1")
    A("s_cmp_gt_u32 s53, 0x4000")
    A("s_cbranch_scc0 F_APOLL")
    A.label("F_APOLLED")
    A("s_barrier")
    A("v_lshlrev_b32 v60, 4, v1")
    A(f"s_lshl_b32 s52, s{sHW}, 12")
    A(f"s_add_u32 s52, s52, {WS_WCF2:#x}")
    for k in range(4):
        A(f"buffer_load_dwordx4 v[{vWc+4*k}:{vWc+4*k+3}], v60, s[{sWS}:{sWS+3}], s52 offen offset:{k*1024} sc1")
    A.label("F_AOK")
    A("s_waitcnt lgkmcnt(0)")
    A("s_barrier")
    T.mark()
    A(f"s_cmp_eq_u32 s{sCNT}, 0")
    A("s_cbranch_scc1 F_LOOP_DONE")
    L=Loop(A)
    A("s_lshl_b32 s51, s51, 7")
    A("v_lshrrev_b32 v60, 3, v1")
    A("v_lshlrev_b32 v60, 4, v60")
    A(f"v_add_u32 v{vLAa}, s51, v60")
    A(f"v_add_u32 v{vLAa}, {LA}, v{vLAa}")
    A("v_and_b32 v60, 7, v7")
    A("v_lshlrev_b32 v60, 2, v60")
    A("v_lshrrev_b32 v61, 3, v7")
    A("v_add_lshl_u32 v60, v60, v61, 2")
    A(f"v_add_u32 v{vLBa}, s51, v60")
    A(f"v_add_u32 v{vLBa}, {LB}, v{vLBa}")
    A("v_bfe_u32 v60, v1, 2, 2")
    A("v_lshl_add_u32 v60, v6, 2, v60")
    A("v_lshlrev_b32 v60, 4, v60")
    A(f"v_add_u32 v{vLCa}, s51, v60")
    A(f"v_add_u32 v{vLCa}, {LC}, v{vLCa}")
    L.ds(f"ds_read_b128 v[{vDA}:{vDA+3}], v{vLAa}","LA")
    L.ds(f"ds_read_b32 v{vLBv}, v{vLBa}","LB")
    L.wait("LB"); da_add(A); lb_decode(A)
    for i in range(4): dma(A,0,sSO0,i)
    e_load(A)
    for i in range(4): dma(A,1,sSO1,i)
    L.ds(f"ds_read_b128 v[{vDA}:{vDA+3}], v{vLAa} offset:128","LA")
    pt_reads(L)
    L.ds(f"ds_read_b32 v{vLBv}, v{vLBa} offset:128","LB")
    L.wait("LB"); da_add(A); lb_decode(A)
    A("s_waitcnt vmcnt(4)")
    ag_reads(L,0); e_mov(A); L.wait("Ag")
    for i in range(4): dma(A,0,sSO0,i)
    e_load(A)
    L.ds(f"ds_read_b128 v[{vPTa}:{vPTa+3}], v{vLCa}","LC")
    L.wait("LC"); pta_add(A)
    for m in zq(0): A(m)
    A(f"v_add_u32 v{vLAa}, 256, v{vLAa}")
    A(f"v_add_u32 v{vLBa}, 256, v{vLBa}")
    A(f"v_add_u32 v{vLCa}, 128, v{vLCa}")
    for i in range(4):
        A(f"v_mov_b32 v{vH+4+i}, 0")
        A(f"v_mov_b32 v{vPT+4+i}, 0")
    A.nop(16)
    T.mark()
    A(".p2align 6")
    A.label("F_LOOP")
    L=Loop(A)
    for k in range(4): nstep(A,L,k)
    A(f"s_sub_u32 s{sCNT}, s{sCNT}, 1")
    A(f"s_cmp_lg_u32 s{sCNT}, 0")
    A("s_cbranch_scc1 F_LOOP")
    A.nop(2)
    A(mfma(vS+48,vH+4,vPT+4,vS+48))
    A.label("F_LOOP_DONE")
    T.mark()
    A("s_waitcnt vmcnt(0) lgkmcnt(0)")
    A(f"s_add_u32 s{sC0}, s{sC0}, s{sSTEP}")
    A(f"s_cmp_lt_u32 s{sC0}, 256")
    A("s_cbranch_scc0 F_EPI")
    A("s_barrier")
    A("s_branch F_BATCH")
    A.label("F_EPI")
    A("s_and_b32 s50, s3, 3")
    A("s_lshl_b32 s51, s50, 14")
    A(f"s_add_u32 s51, s51, {WS_W2F2:#x}")
    A("v_lshlrev_b32 v4, 4, v1")
    for i in range(16):
        A(f"s_add_u32 s52, s51, {(i//4)*4096}")
        A(f"buffer_load_dwordx4 v[{64+4*i}:{67+4*i}], v4, s[{sWS}:{sWS+3}], s52 offen offset:{(i%4)*1024} sc1")
    srd(A,sSD,78,79,256)
    A("v_lshlrev_b32 v5, 3, v6")
    A("s_lshl_b32 s52, s50, 6")
    for g4 in range(4):
        A(f"buffer_load_dwordx2 v[{32+2*g4}:{33+2*g4}], v5, s[{sSD}:{sSD+3}], s52 offen offset:{g4*16}")
    A("s_barrier")
    A.nop(8)
    A(f"s_mov_b32 s53, {f2u(ISCALE):#x}")
    A(f"s_lshl_b32 s54, s{sG}, 3")
    A(f"s_lshl_b32 s55, s{sHW}, 2")
    A("s_add_u32 s54, s54, s55")
    A("s_lshl_b32 s54, s54, 11")
    A(f"s_add_u32 s54, s54, {STG}")
    A("v_add_u32 v46, s54, v4")
    for k in range(4):
        p=48+8*(k&1)
        for r in range(16): A(f"v_mul_f32 v{vS+16*k+r}, s53, v{vS+16*k+r}")
        for i in range(8): A(f"v_cvt_pk_bf16_f32 v{p+i}, v{vS+16*k+2*i}, v{vS+16*k+2*i+1}")
        A(f"ds_write_b128 v46, v[{p}:{p+3}] offset:{k*2048}")
        A(f"ds_write_b128 v46, v[{p+4}:{p+7}] offset:{k*2048+1024}")
    A("s_waitcnt lgkmcnt(0)")
    A("s_barrier")
    T.mark()
    A("s_lshr_b32 s55, s3, 2")
    for gi in range(2):
        A("s_lshl_b32 s56, s55, 1")
        A(f"s_add_u32 s56, s56, {gi}")
        A("s_lshl_b32 s57, s56, 14")
        A(f"s_add_u32 s57, s57, {STG}")
        A("v_add_u32 v46, s57, v4")
        for i in range(16):
            A(f"ds_read_b128 v[{128+64*gi+4*i}:{131+64*gi+4*i}], v46 offset:{i*1024}")
        A("s_lshl_b32 s58, s56, 7")
        A(f"s_add_u32 s58, s58, {NODECNT}")
        A("v_lshlrev_b32 v26, 2, v7")
        A("v_add_u32 v26, s58, v26")
        A(f"ds_read_b32 v{24+gi}, v26")
    A("s_waitcnt vmcnt(0)")
    for g4 in range(4):
        for h in range(2):
            A(f"v_lshlrev_b32 v{8+4*g4+2*h}, 16, v{32+2*g4+h}")
            A(f"v_and_b32 v{8+4*g4+2*h+1}, 0xffff0000, v{32+2*g4+h}")
    A(f"s_add_u32 s60, s{sN0}, {NPW}")
    A(f"s_min_u32 s60, s60, {N}")
    A("s_waitcnt lgkmcnt(0)")
    accs=[32,48]
    for i in range(16):
        for gi in range(2):
            A(mfma(accs[gi],64+4*i,128+64*gi+4*i,None if i==0 else accs[gi]))
    A.nop(16)
    for gi in range(2):
        acc=accs[gi]
        A("s_lshl_b32 s56, s55, 1")
        A(f"s_add_u32 s56, s56, {gi}")
        A("s_mul_i32 s58, s56, 25")
        A(f"v_cvt_f32_u32 v{24+gi}, v{24+gi}")
        for r in range(16): A(f"v_fma_f32 v{acc+r}, v{24+gi}, v{8+r}, v{acc+r}")
        for i in range(8): A(f"v_cvt_pk_bf16_f32 v{64+8*gi+i}, v{acc+2*i}, v{acc+2*i+1}")
        A("v_add_u32 v27, s58, v7")
        A(f"v_add_u32 v27, s{sN0}, v27")
        A("v_cmp_gt_u32 vcc, s60, v27")
        A("v_cmp_gt_u32 s[58:59], 25, v7")
        A.nop(2)
        A("s_and_b64 vcc, vcc, s[58:59]")
        A("s_and_saveexec_b64 s[58:59], vcc")
        A(f"s_cbranch_execz F_ST{gi}")
        A("v_lshlrev_b32 v27, 8, v27")
        A("v_add_u32 v27, v27, v5")
        for g4 in range(4):
            A(f"buffer_store_dwordx2 v[{64+8*gi+2*g4}:{65+8*gi+2*g4}], v27, s[{sOUT}:{sOUT+3}], s52 offen offset:{g4*16}")
        A.label(f"F_ST{gi}")
        A("s_mov_b64 exec, s[58:59]")
    if diag:
        A("s_waitcnt vmcnt(0)")
        T.mark()
        A("s_load_dwordx2 s[60:61], s[0:1], 80")
        A("s_waitcnt lgkmcnt(0)")
        T.dump(1,60,61)
    A.label("F_END")
    A("s_endpgm")
    return name, A.text(), kd(name,256,102), LDS_TOTAL
```

```python
from common import *
K1_LDS=64*1024+32*1024+2048
def gen_k1(diag=False):
    A=Asm()
    T=Stamps(A,diag)
    name="prep_kernel"
    A(f".globl {name}\n.p2align 8\n.type {name},@function")
    A.label(name)
    HIST=0; PRE=1024; XL=2048; WL=2048+32768
    sX=8; sSRC=12; sDST=16; sW1=20; sW2=24; sWS=28
    sWG=2; sWAVE=3
    A("s_cmp_ge_u32 s2, 256")
    A("s_cbranch_scc1 K1_END")
    A("s_load_dwordx2 s[32:33], s[0:1], 0")
    A("s_load_dwordx4 s[36:39], s[0:1], 16")
    A("s_load_dwordx2 s[40:41], s[0:1], 32")
    A("s_load_dwordx2 s[42:43], s[0:1], 48")
    A("s_load_dwordx2 s[44:45], s[0:1], 80")
    A("v_and_b32 v1, 63, v0")
    A("v_lshrrev_b32 v2, 6, v0")
    A.nop(1)
    A("v_readfirstlane_b32 s3, v2")
    A("s_waitcnt lgkmcnt(0)")
    T.mark()
    srd(A,sX,32,33,N*256)
    srd(A,sSRC,36,37,E*4)
    srd(A,sDST,38,39,E*4)
    srd(A,sW1,40,41,272*512)
    srd(A,sW2,42,43,256*256)
    srd(A,sWS,44,45,WS_END)
    A(f"s_mul_i32 s46, s2, {CH*4}")
    A("v_lshlrev_b32 v3, 4, v0")
    A("v_add_u32 v3, s46, v3")
    A(f"buffer_load_dwordx4 v[4:7], v3, s[{sDST}:{sDST+3}], 0 offen")
    A(f"buffer_load_dwordx4 v[8:11], v3, s[{sSRC}:{sSRC+3}], 0 offen")
    A("v_lshrrev_b32 v12, 4, v1")
    A("v_and_b32 v13, 15, v1")
    A("v_xor_b32 v13, v13, v12")
    A("v_lshlrev_b32 v13, 4, v13")
    A(f"s_mul_i32 s47, s2, {NPW}")
    A("s_lshl_b32 s48, s3, 4")
    A("s_add_u32 s48, s48, s47")
    A("v_add_u32 v14, s48, v12")
    A("v_lshlrev_b32 v14, 8, v14")
    A("s_lshl_b32 s49, s3, 12")
    A(f"s_add_u32 s49, s49, {XL}")
    for i in range(4):
        A(f"v_xor_b32 v15, {64*i}, v13")
        A("v_add_u32 v15, v14, v15")
        A(f"s_mov_b32 s50, {i*1024}")
        A(f"s_add_u32 m0, s49, {i*1024}")
        A.nop(1)
        A(f"buffer_load_dwordx4 v15, s[{sX}:{sX+3}], s50 offen lds")
    A("v_lshlrev_b32 v16, 4, v1")
    A("s_lshl_b32 s51, s3, 13")
    for i in range(8):
        A(f"s_add_u32 s50, s51, {i*1024}")
        A(f"s_add_u32 m0, s50, {WL}")
        A.nop(1)
        A(f"buffer_load_dwordx4 v16, s[{sW1}:{sW1+3}], s50 offen lds")
    A("v_lshlrev_b32 v17, 2, v0")
    A("v_mov_b32 v18, 0")
    A("v_cmp_gt_u32 vcc, 256, v0")
    A("s_and_saveexec_b64 s[52:53], vcc")
    A(f"ds_write_b32 v17, v18 offset:{HIST}")
    A("s_mov_b64 exec, s[52:53]")
    A("s_waitcnt lgkmcnt(0)")
    A("s_barrier")
    A(f"s_mul_i32 s54, s2, {CH}")
    A(f"s_sub_u32 s55, {E}, s54")
    A(f"s_min_u32 s55, s55, {CH}")
    A("v_lshlrev_b32 v19, 2, v0")
    A("s_waitcnt vmcnt(12)")
    T.mark()
    A("v_cmp_gt_u32 vcc, s55, v19")
    A("s_and_saveexec_b64 s[56:57], vcc")
    A("s_mov_b64 s[58:59], exec")
    A("s_cbranch_execz K1_A")
    A("s_mov_b32 s60, 42800")
    A("v_mov_b32 v24, 1")
    for k in range(4):
        A(f"v_mul_u32_u24 v{20+k}, s60, v{4+k}")
        A(f"v_lshrrev_b32 v{20+k}, 22, v{20+k}")
        A(f"v_lshlrev_b32 v25, 2, v{20+k}")
        A(f"ds_add_rtn_u32 v{28+k}, v25, v24 offset:{HIST}")
    A.label("K1_A")
    A("s_mov_b64 exec, s[56:57]")
    A("s_waitcnt lgkmcnt(0)")
    A("s_barrier")
    A("s_cmp_lg_u32 s3, 0")
    A("s_cbranch_scc1 K1_B")
    A("v_lshlrev_b32 v32, 4, v1")
    A(f"ds_read_b128 v[36:39], v32 offset:{HIST}")
    A("s_waitcnt lgkmcnt(0)")
    A("v_add_u32 v40, v36, v37")
    A("v_add_u32 v41, v40, v38")
    A("v_add_u32 v42, v41, v39")
    A("v_mov_b32 v43, v42")
    for sh in (1,2,4,8):
        A.nop(2)
        A(f"v_add_u32_dpp v43, v43, v43 row_shr:{sh} row_mask:0xf bank_mask:0xf bound_ctrl:0")
    A.nop(2)
    A("v_add_u32_dpp v43, v43, v43 row_bcast:15 row_mask:0xa bank_mask:0xf")
    A.nop(2)
    A("v_add_u32_dpp v43, v43, v43 row_bcast:31 row_mask:0xc bank_mask:0xf")
    A("v_sub_u32 v44, v43, v42")
    A("v_add_u32 v45, v44, v36")
    A("v_add_u32 v46, v44, v40")
    A("v_add_u32 v47, v44, v41")
    A(f"ds_write_b128 v32, v[44:47] offset:{PRE}")
    A("v_lshlrev_b32 v33, 12, v1")
    A("s_lshl_b32 s61, s2, 2")
    A(f"s_add_u32 s61, s61, {WS_CS:#x}")
    for k in range(4):
        A(f"v_lshlrev_b32 v34, 16, v{36+k}")
        A(f"v_or_b32 v34, v34, v{44+k}")
        A(f"buffer_store_dword v34, v33, s[{sWS}:{sWS+3}], s61 offen offset:{k*1024}")
        A.nop(1)
    A.label("K1_B")
    A("s_waitcnt vmcnt(0) lgkmcnt(0)")
    A("s_barrier")
    T.mark()
    A("s_mov_b64 exec, s[58:59]")
    A("s_cbranch_execz K1_C")
    for k in range(4):
        A(f"v_lshlrev_b32 v25, 2, v{20+k}")
        A(f"ds_read_b32 v{32+k}, v25 offset:{PRE}")
    A(f"s_mul_i32 s62, s2, {CH*8}")
    A(f"s_add_u32 s62, s62, {WS_REC:#x}")
    A("s_waitcnt lgkmcnt(0)")
    for k in range(4):
        A(f"v_add_u32 v{32+k}, v{32+k}, v{28+k}")
        A(f"v_lshlrev_b32 v{32+k}, 3, v{32+k}")
        A(f"v_mul_u32_u24 v36, {NPW}, v{20+k}")
        A(f"v_sub_u32 v36, v{4+k}, v36")
        A(f"v_lshlrev_b32 v36, 16, v36")
        A(f"v_or_b32 v{38+2*k}, v36, v{8+k}")
        A(f"v_add_u32 v{39+2*k}, s54, v19")
        A(f"v_add_u32 v{39+2*k}, {k}, v{39+2*k}")
        A(f"buffer_store_dwordx2 v[{38+2*k}:{39+2*k}], v{32+k}, s[{sWS}:{sWS+3}], s62 offen")
    A.label("K1_C")
    A("s_mov_b64 exec, s[56:57]")
    Wf=64
    A("v_lshrrev_b32 v50, 5, v1")
    A("v_lshrrev_b32 v51, 2, v1")
    A("v_and_b32 v51, 3, v51")
    A("v_lshl_add_u32 v52, v50, 3, v51")
    A("v_lshlrev_b32 v52, 9, v52")
    A("v_lshrrev_b32 v53, 4, v1")
    A("v_and_b32 v53, 1, v53")
    A("v_lshlrev_b32 v53, 5, v53")
    A("v_and_b32 v54, 3, v1")
    A("v_lshlrev_b32 v54, 3, v54")
    A("v_add3_u32 v52, v52, v53, v54")
    A("s_lshl_b32 s63, s3, 6")
    A("v_add_u32 v52, s63, v52")
    A(f"v_add_u32 v52, {WL}, v52")
    for s in range(8):
        for jj in range(2):
            A(f"ds_read_b64_tr_b16 v[{Wf+4*s+2*jj}:{Wf+4*s+2*jj+1}], v52 offset:{s*8192+jj*2048}")
        if s%4==3: A("s_waitcnt lgkmcnt(0)")
    A("v_and_b32 v55, 31, v1")
    A("v_and_b32 v56, 15, v1")
    A("v_xor_b32 v56, v56, v50")
    A("v_lshlrev_b32 v56, 4, v56")
    A("v_lshlrev_b32 v57, 8, v55")
    A(f"v_add_u32 v57, {XL}, v57")
    for s in range(8):
        A(f"v_xor_b32 v{100+s}, {32*s}, v56")
        A(f"v_add_u32 v{100+s}, v{100+s}, v57")
    A("v_add_u32 v58, s47, v55")
    A("v_lshlrev_b32 v59, 9, v58")
    A("v_lshlrev_b32 v60, 5, v50")
    A("v_add_u32 v59, v59, v60")
    A("v_add_u32 v59, s63, v59")
    A(f"s_add_u32 s64, s47, {NPW}")
    A(f"s_min_u32 s64, s64, {N}")
    A(f"s_mov_b32 s65, {f2u(SCALE):#x}")
    Xo=112; acc=144
    for nt in range(4):
        for s in range(8):
            A(f"ds_read_b128 v[{Xo+4*s}:{Xo+4*s+3}], v{100+s} offset:{nt*8192}")
        for s in range(8):
            A(f"s_waitcnt lgkmcnt({7-s})")
            c = "0" if s==0 else f"v[{acc}:{acc+15}]"
            A(f"v_mfma_f32_32x32x16_bf16 v[{acc}:{acc+15}], v[{Wf+4*s}:{Wf+4*s+3}], v[{Xo+4*s}:{Xo+4*s+3}], {c}")
        A.nop(16)
        for r in range(16):
            A(f"v_mul_f32 v{acc+r}, s65, v{acc+r}")
        for i in range(8):
            A(f"v_cvt_pk_bf16_f32 v{160+i}, v{acc+2*i}, v{acc+2*i+1}")
        A(f"v_add_u32 v61, {32*nt}, v58")
        A("v_cmp_gt_u32 vcc, s64, v61")
        A("s_and_saveexec_b64 s[66:67], vcc")
        A(f"s_cbranch_execz K1_S{nt}")
        A(f"s_mov_b32 s68, {nt*32*512}")
        A(f"buffer_store_dwordx4 v[160:163], v59, s[{sWS}:{sWS+3}], s68 offen")
        A(f"buffer_store_dwordx4 v[164:167], v59, s[{sWS}:{sWS+3}], s68 offen offset:16")
        A.label(f"K1_S{nt}")
        A("s_mov_b64 exec, s[66:67]")
        A.nop(2)
    T.mark()
    A("s_cmp_ge_u32 s2, 68")
    A("s_cbranch_scc1 K1_FIN")
    A("v_lshrrev_b32 v20, 2, v0")
    A("v_and_b32 v20, 63, v20")
    A("v_and_b32 v21, 3, v0")
    A("v_lshrrev_b32 v22, 8, v0")
    A("v_and_b32 v23, 31, v20")
    A("v_lshrrev_b32 v24, 5, v20")
    A("s_cmp_ge_u32 s2, 36")
    A("s_cbranch_scc1 K1_W2")
    A("s_cmp_ge_u32 s2, 32")
    A("s_cbranch_scc1 K1_WC")
    A("s_lshl_b32 s70, s2, 1")
    A("v_add_u32 v25, s70, v22")
    A("v_lshrrev_b32 v26, 3, v25")
    A("v_and_b32 v27, 7, v25")
    A("v_lshlrev_b32 v27, 4, v27")
    A("v_lshl_add_u32 v27, v24, 3, v27")
    A("v_lshl_add_u32 v27, v21, 1, v27")
    A("v_add_u32 v27, 128, v27")
    A("v_lshl_add_u32 v28, v26, 5, v23")
    A("v_lshlrev_b32 v27, 9, v27")
    A("v_lshl_add_u32 v27, v28, 1, v27")
    A(f"buffer_load_ushort v30, v27, s[{sW1}:{sW1+3}], 0 offen")
    A(f"buffer_load_ushort v31, v27, s[{sW1}:{sW1+3}], 0 offen offset:512")
    A("s_lshl_b32 s71, s2, 11")
    A(f"s_add_u32 s71, s71, {WS_W1BF:#x}")
    A("v_lshlrev_b32 v32, 2, v0")
    A("s_waitcnt vmcnt(0)")
    A("v_lshl_or_b32 v30, v31, 16, v30")
    A(f"buffer_store_dword v30, v32, s[{sWS}:{sWS+3}], s71 offen")
    A("s_branch K1_FIN")
    A.label("K1_WC")
    A("s_sub_u32 s70, s2, 32")
    A("s_lshl_b32 s72, s70, 1")
    A("v_add_u32 v26, s72, v22")
    A("v_lshlrev_b32 v27, 3, v24")
    A("v_lshl_add_u32 v27, v21, 1, v27")
    A("v_add_u32 v27, 256, v27")
    A("v_lshl_add_u32 v28, v26, 5, v23")
    A("v_lshlrev_b32 v27, 9, v27")
    A("v_lshl_add_u32 v27, v28, 1, v27")
    A(f"buffer_load_ushort v30, v27, s[{sW1}:{sW1+3}], 0 offen")
    A(f"buffer_load_ushort v31, v27, s[{sW1}:{sW1+3}], 0 offen offset:512")
    A("s_lshl_b32 s71, s70, 11")
    A(f"s_add_u32 s71, s71, {WS_WCF:#x}")
    A("v_lshlrev_b32 v32, 2, v0")
    A("s_waitcnt vmcnt(0)")
    A("v_lshlrev_b32 v30, 16, v30")
    A("v_lshlrev_b32 v31, 16, v31")
    A("v_mul_f32 v30, s65, v30")
    A("v_mul_f32 v31, s65, v31")
    A("v_cvt_pk_bf16_f32 v30, v30, v31")
    A(f"buffer_store_dword v30, v32, s[{sWS}:{sWS+3}], s71 offen")
    A("s_branch K1_FIN")
    A.label("K1_W2")
    A("s_sub_u32 s70, s2, 36")
    A("s_lshl_b32 s72, s70, 1")
    A("v_add_u32 v25, s72, v22")
    A("v_lshrrev_b32 v26, 4, v25")
    A("v_lshrrev_b32 v27, 1, v25")
    A("v_and_b32 v27, 7, v27")
    A("v_lshlrev_b32 v27, 5, v27")
    A("v_and_b32 v28, 1, v25")
    A("v_lshlrev_b32 v28, 1, v28")
    A("v_lshrrev_b32 v29, 1, v21")
    A("v_add_u32 v28, v28, v29")
    A("v_lshl_add_u32 v27, v28, 3, v27")
    A("v_lshl_add_u32 v27, v24, 2, v27")
    A("v_and_b32 v29, 1, v21")
    A("v_lshl_add_u32 v27, v29, 1, v27")
    A("v_lshl_add_u32 v28, v26, 5, v23")
    A("v_lshlrev_b32 v27, 8, v27")
    A("v_lshl_add_u32 v27, v28, 1, v27")
    A(f"buffer_load_ushort v30, v27, s[{sW2}:{sW2+3}], 0 offen")
    A(f"buffer_load_ushort v31, v27, s[{sW2}:{sW2+3}], 0 offen offset:256")
    A("s_lshl_b32 s71, s70, 11")
    A(f"s_add_u32 s71, s71, {WS_W2F:#x}")
    A("v_lshlrev_b32 v32, 2, v0")
    A("s_waitcnt vmcnt(0)")
    A("v_lshl_or_b32 v30, v31, 16, v30")
    A(f"buffer_store_dword v30, v32, s[{sWS}:{sWS+3}], s71 offen")
    A.label("K1_FIN")
    if diag:
        A("s_waitcnt vmcnt(0)")
        T.mark()
        T.dump(0,44,45)
    A.label("K1_END")
    A("s_endpgm")
    return name, A.text(), kd(name,176,102 if diag else 80), K1_LDS
```

```python
from common import *
BINCNT=0; BINBASE=256; NODECNT=512; CURSOR=1024; GINFO=1040
IDT=2048; IDS=80
LCAP=2176
LA=5120; LB=LA+LCAP*4; LC=LB+LCAP*4
RAW=LC+LCAP*4
XL=RAW+16384
STG=XL+32768
K2_LDS=STG+65536
CAP=2048; MAXTOT=1920
sX=8; sE=12; sB1=16; sB2=20; sOUT=24; sA=28; sWS=32
sN0=36; sG=37; sHW=38; sSO0=39; sSO1=40; sM0=41; sCNT=42; sC0=43; sSTEP=44; sTOT=45; sBN=46; sMASK=47
vAgA=8
vDA=12
vLP0=16; vLP1=17; vLAa=18; vLBa=19; vLCa=20; vLBv=21; vEa=22; vPtA=23
vPTa=24
vH16=28; vPTl=29; vPtB=30
vT=40
vH=56; vPT=64; vPt=72; vEc=80; vEn=84; vAg=88; vSel=104; vWc=112; vBn=128; vZ=160; vS=192

class Loop:
    def __init__(self,A): self.A=A; self.q=[]
    def ds(self,text,tag): self.A(text); self.q.append(tag)
    def wait(self,tag,extra=""):
        idx=max(i for i,t in enumerate(self.q) if t==tag)
        n=min(len(self.q)-1-idx,15)
        self.A(f"s_waitcnt lgkmcnt({n})")

def mfma(d,a,b,c=None):
    cs="0" if c is None else f"v[{c}:{c+15}]"
    return f"v_mfma_f32_32x32x16_bf16 v[{d}:{d+15}], v[{a}:{a+3}], v[{b}:{b+3}], {cs}"

ABL=set()
def silu_stream(z):
    o=[]
    if 'novalu' in ABL: return ['s_nop 0']*72
    for hb in range(2):
        b=8*hb
        o+=[f"v_exp_f32 v{vT+b+i}, v{z+b+i}" for i in range(8)]
        o+=[f"v_add_f32 v{vT+b+i}, 1.0, v{vT+b+i}" for i in range(8)]
        o+=[f"v_rcp_f32 v{vT+b+i}, v{vT+b+i}" for i in range(8)]
        o+=[f"v_mul_f32 v{vT+b+i}, v{vT+b+i}, v{z+b+i}" for i in range(8)]
        o+=[f"v_cvt_pk_bf16_f32 v{vH+4*hb+i}, v{vT+b+2*i}, v{vT+b+2*i+1}" for i in range(4)]
    return o

def dma(A,slot,so,i):
    A(f"s_add_u32 m0, s{sM0}, {slot*4096+i*1024}")
    A("s_nop 0")
    A(f"buffer_load_dwordx4 v{vDA+i}, s[{sA}:{sA+3}], s{so} offen lds")

def zq(kn):
    z=vZ+16*(kn&1)
    return [mfma(z,vEc,vWc+4*kn), mfma(z,vPt,vBn+8*kn,z), mfma(z,vPt+4,vBn+8*kn+4,z),
            mfma(z,vAg+8*(kn&1),vSel,z), mfma(z,vAg+8*(kn&1)+4,vSel+4,z)]

def ag_reads(L,slot):
    for q in range(4):
        L.ds(f"ds_read_b128 v[{vAg+4*q}:{vAg+4*q+3}], v{vAgA+q} offset:{slot*4096}","Ag")
def da_add(A):
    for i in range(4): A(f"v_add_u32 v{vDA+i}, v{vDA+i}, v{vLP0+(i&1)}")
def lb_decode(A):
    A(f"v_and_or_b32 v{vEa}, v{vLBv}, s{sMASK}, v{vH16}")
    A(f"v_lshrrev_b32 v{vLBv}, 24, v{vLBv}")
    A(f"v_mad_u32_u24 v{vPtA}, v{vLBv}, v31, v{vPtB}")
def pt_reads(L):
    L.ds(f"ds_read_b128 v[{vPt}:{vPt+3}], v{vPtA}","Pt")
    L.ds(f"ds_read_b128 v[{vPt+4}:{vPt+7}], v{vPtA} offset:32","Pt")
def e_load(A): A(f"buffer_load_dwordx4 v[{vEn}:{vEn+3}], v{vEa}, s[{sE}:{sE+3}], 0 offen")
def e_mov(A):
    for i in range(4): A(f"v_mov_b32 v{vEc+i}, v{vEn+i}")
def pta_add(A):
    for i in range(4): A(f"v_add_u32 v{vPTa+i}, v{vPTa+i}, v{vPTl}")

def nstep(A,L,k):
    z=vZ+16*(k&1); kn=(k+1)&3; kp=(k-1)&3
    val=silu_stream(z)
    mz=zq(kn)
    seg2=mfma(vS+16*kp,vH+4,vPT+4,vS+16*kp)
    seg1=mfma(vS+16*k,vH,vPT,vS+16*k)
    ev={}
    def at(p,f): ev.setdefault(p,[]).append(f)
    if k==0:
        def f0():
            L.ds(f"ds_read_b64_tr_b16 v[{vPT}:{vPT+1}], v{vPTa}","PT0")
            L.ds(f"ds_read_b64_tr_b16 v[{vPT+2}:{vPT+3}], v{vPTa+1}","PT0")
            A(seg2)
            L.ds(f"ds_read_b64_tr_b16 v[{vPT+4}:{vPT+5}], v{vPTa+2}","PT1")
            L.ds(f"ds_read_b64_tr_b16 v[{vPT+6}:{vPT+7}], v{vPTa+3}","PT1")
        at(0,f0)
    if k==1:
        def f0():
            A("s_waitcnt vmcnt(5)")
            ag_reads(L,1)
            L.wait("PT1")
            A(seg2)
        at(0,f0)
        at(16,lambda: L.wait("Ag"))
        for i in range(4): at(16+2*i,(lambda i=i: dma(A,1,sSO1,i)))
        at(26,lambda: L.ds(f"ds_read_b128 v[{vDA}:{vDA+3}], v{vLAa}","LA"))
    if k==2:
        def f0():
            L.wait("LA"); da_add(A); A(seg2)
        at(0,f0)
        def f24():
            pt_reads(L)
            L.ds(f"ds_read_b32 v{vLBv}, v{vLBa}","LB")
        at(24,f24)
        at(40,lambda: (L.wait("LB"), lb_decode(A)))
    if k==3:
        def f0():
            A("s_waitcnt vmcnt(4)")
            ag_reads(L,0)
            e_mov(A)
            A(seg2)
        at(0,f0)
        at(6,lambda: L.wait("Pt"))
        at(16,lambda: L.wait("Ag"))
        for i in range(4): at(16+2*i,(lambda i=i: dma(A,0,sSO0,i)))
        at(24,lambda: e_load(A))
        at(26,lambda: L.ds(f"ds_read_b128 v[{vPTa}:{vPTa+3}], v{vLCa}","LC"))
        def f42():
            L.wait("LC"); pta_add(A)
            A(f"v_add_u32 v{vLAa}, 128, v{vLAa}")
            A(f"v_add_u32 v{vLBa}, 128, v{vLBa}")
            A(f"v_add_u32 v{vLCa}, 128, v{vLCa}")
        at(42,f42)
    for p,m in zip((6,14,22,30,38),mz): at(p,(lambda m=m: A(m)))
    if k==0: at(46,lambda: L.wait("PT0"))
    at(46,lambda: A(seg1))
    for i,v in enumerate(val):
        for f in ev.get(i,[]): f()
        A(v)

def gen_k2(diag=False):
    A=Asm()
    T=Stamps(A,diag)
    name=KNAME+"_kernel"
    A(f".globl {name}\n.p2align 8\n.type {name},@function")
    A.label(name)
    A("s_cmp_ge_u32 s2, 256")
    A("s_cbranch_scc1 K2_END")
    A("s_load_dwordx4 s[64:67], s[0:1], 0")
    A("s_load_dwordx2 s[68:69], s[0:1], 40")
    A("s_load_dwordx4 s[72:75], s[0:1], 56")
    A("s_load_dwordx2 s[76:77], s[0:1], 80")
    A("v_and_b32 v1, 63, v0")
    A("v_lshrrev_b32 v2, 6, v0")
    A.nop(1)
    A("v_readfirstlane_b32 s3, v2")
    A("s_waitcnt lgkmcnt(0)")
    T.mark()
    srd(A,sX,64,65,N*256)
    srd(A,sE,66,67,E*32)
    srd(A,sB1,68,69,512)
    srd(A,sB2,72,73,256)
    srd(A,sOUT,74,75,N*256)
    srd(A,sA,76,77,N*512)
    srd(A,sWS,76,77,WS_END)
    A(f"s_mul_i32 s{sN0}, s2, {NPW}")
    A(f"s_lshr_b32 s{sG}, s3, 1")
    A(f"s_and_b32 s{sHW}, s3, 1")
    A(f"s_lshl_b32 s{sSO0}, s{sHW}, 8")
    A(f"s_add_u32 s{sSO1}, s{sSO0}, 128")
    A(f"s_lshl_b32 s{sM0}, s3, 13")
    A(f"s_add_u32 s{sM0}, s{sM0}, {STG}")
    A(f"s_mov_b32 s{sMASK}, 0x00ffffff")
    A(f"s_mov_b32 s{sBN}, 0")
    A(f"s_mov_b32 s{sC0}, 0")
    A(f"s_mov_b32 s{sSTEP}, 256")
    A("v_lshrrev_b32 v4, 1, v0")
    A("v_lshlrev_b32 v5, 2, v4")
    A("s_lshl_b32 s48, s2, 10")
    A(f"s_add_u32 s48, s48, {WS_CS:#x}")
    A(f"buffer_load_dword v3, v5, s[{sWS}:{sWS+3}], s48 offen")
    A("v_lshlrev_b32 v6, 4, v1")
    A("s_lshl_b32 s49, s3, 13")
    for i in range(8):
        A(f"s_add_u32 s50, s49, {WS_W1BF+i*1024:#x}")
        A(f"s_add_u32 m0, s{sM0}, {i*1024}")
        A.nop(1)
        A(f"buffer_load_dwordx4 v6, s[{sWS}:{sWS+3}], s50 offen lds")
    A("v_lshrrev_b32 v32, 4, v1")
    A("v_and_b32 v33, 15, v1")
    A("v_xor_b32 v33, v33, v32")
    A("v_lshlrev_b32 v33, 4, v33")
    A("s_lshl_b32 s48, s3, 4")
    A(f"s_add_u32 s48, s48, s{sN0}")
    A("v_add_u32 v34, s48, v32")
    A("v_lshlrev_b32 v34, 8, v34")
    A("s_lshl_b32 s49, s3, 12")
    A(f"s_add_u32 s49, s49, {XL}")
    for i in range(4):
        A(f"v_xor_b32 v35, {64*i}, v33")
        A("v_add_u32 v35, v34, v35")
        A(f"s_mov_b32 s50, {i*1024}")
        A(f"s_add_u32 m0, s49, {i*1024}")
        A.nop(1)
        A(f"buffer_load_dwordx4 v35, s[{sX}:{sX+3}], s50 offen lds")
    A(f"s_lshl_b32 s48, s{sHW}, 12")
    A(f"s_add_u32 s48, s48, {WS_WCF:#x}")
    for k in range(4):
        A(f"buffer_load_dwordx4 v[{vWc+4*k}:{vWc+4*k+3}], v6, s[{sWS}:{sWS+3}], s48 offen offset:{k*1024}")
    A("v_and_b32 v7, 31, v1")
    A("v_lshlrev_b32 v36, 1, v7")
    A(f"s_lshl_b32 s48, s{sHW}, 8")
    for k in range(4):
        A(f"buffer_load_ushort v{32+k}, v36, s[{sB1}:{sB1+3}], s48 offen offset:{k*64}")
    A("v_mov_b32 v37, 0")
    A("v_lshlrev_b32 v38, 2, v0")
    A("v_cmp_gt_u32 vcc, 272, v0")
    A("s_and_saveexec_b64 s[50:51], vcc")
    A("ds_write_b32 v38, v37")
    A("s_mov_b64 exec, s[50:51]")
    for rnd in range(2):
        A(f"v_add_u32 v39, {512*rnd}, v0")
        A("v_mul_u32_u24 v40, 3277, v39")
        A("v_lshrrev_b32 v40, 16, v40")
        A("v_mul_u32_u24 v41, 20, v40")
        A("v_sub_u32 v41, v39, v41")
        A("v_lshlrev_b32 v41, 1, v41")
        A("v_mov_b32 v42, 0")
        A("v_mov_b32 v43, 0x3f80")
        A("v_cmp_eq_u32 vcc, v40, v41")
        A.nop(2)
        A("v_cndmask_b32 v42, v42, v43, vcc")
        A("v_add_u32 v41, 1, v41")
        A("v_mov_b32 v43, 0x3f800000")
        A("v_cmp_eq_u32 vcc, v40, v41")
        A.nop(2)
        A("v_cndmask_b32 v42, v42, v43, vcc")
        A("v_cmp_gt_u32 vcc, 32, v40")
        A.nop(2)
        A("v_cndmask_b32 v42, 0, v42, vcc")
        A("v_lshlrev_b32 v41, 2, v39")
        A("v_cmp_gt_u32 vcc, 660, v39")
        A("s_and_saveexec_b64 s[50:51], vcc")
        A(f"ds_write_b32 v41, v42 offset:{IDT}")
        A("s_mov_b64 exec, s[50:51]")
    A("v_lshrrev_b32 v44, 5, v1")
    A(f"v_lshlrev_b32 v{vH16}, 4, v44")
    A(f"v_add_u32 v{vPtB}, {IDT}, v{vH16}")
    A(f"v_mov_b32 v31, {IDS}")
    A("v_lshrrev_b32 v45, 4, v1")
    A("v_and_b32 v45, 1, v45")
    A("v_lshlrev_b32 v45, 5, v45")
    A("v_and_b32 v46, 3, v1")
    A("v_lshl_add_u32 v45, v46, 3, v45")
    A(f"v_add_u32 v{vPTl}, {IDT}, v45")
    A("v_and_b32 v45, 7, v1")
    A("v_lshrrev_b32 v46, 4, v1")
    A("v_xor_b32 v45, v45, v46")
    A(f"v_lshlrev_b32 v{vLP0}, 4, v45")
    A(f"v_xor_b32 v{vLP1}, 64, v{vLP0}")
    A("v_lshrrev_b32 v45, 1, v7")
    A("v_and_b32 v45, 7, v45")
    A("v_xor_b32 v45, v45, v44")
    A("v_lshlrev_b32 v45, 4, v45")
    A("v_lshlrev_b32 v46, 7, v7")
    A(f"v_add_u32 v46, s{sM0}, v46")
    for q in range(4):
        A(f"v_xor_b32 v47, {32*q}, v45")
        A(f"v_add_u32 v{vAgA+q}, v46, v47")
    for qq in range(2):
        A("v_lshlrev_b32 v45, 4, v44")
        A("v_sub_u32 v45, v7, v45")
        A(f"v_subrev_u32 v45, {4*qq}, v45")
        for i in range(4):
            j0,j1=2*i,2*i+1
            t0=8*(j0>>2)+(j0&3); t1=8*(j1>>2)+(j1&3)
            A("v_mov_b32 v46, 0x3f80")
            A(f"v_cmp_eq_u32 vcc, {t0}, v45")
            A.nop(2)
            A(f"v_cndmask_b32 v47, 0, v46, vcc")
            A("v_mov_b32 v46, 0x3f800000")
            A(f"v_cmp_eq_u32 vcc, {t1}, v45")
            A.nop(2)
            A(f"v_cndmask_b32 v48, 0, v46, vcc")
            A(f"v_or_b32 v{vSel+4*qq+i}, v47, v48")
    for i in range(64): A(f"v_mov_b32 v{vS+i}, 0")
    A.label("K2_BATCH")
    A("v_mov_b32 v48, 0\nv_mov_b32 v49, 0\nv_mov_b32 v50, 0\nv_mov_b32 v51, 0")
    A("v_mov_b32 v52, 0x20000000\nv_mov_b32 v53, 0x20000000\nv_mov_b32 v54, 0x20000000\nv_mov_b32 v55, 0x20000000")
    A(f"v_mov_b32 v56, {32*IDS}\nv_mov_b32 v57, {32*IDS}\nv_mov_b32 v58, {32*IDS}\nv_mov_b32 v59, {32*IDS}")
    A("v_lshlrev_b32 v45, 4, v0")
    A(f"v_add_u32 v46, {LA}, v45")
    A("ds_write_b128 v46, v[48:51]")
    A(f"ds_write_b128 v46, v[52:55] offset:{LB-LA}")
    A(f"ds_write_b128 v46, v[56:59] offset:{LC-LA}")
    A("v_cmp_gt_u32 vcc, 32, v0")
    A("s_and_saveexec_b64 s[50:51], vcc")
    A("ds_write_b128 v46, v[48:51] offset:8192")
    A(f"ds_write_b128 v46, v[52:55] offset:{LB-LA+8192}")
    A(f"ds_write_b128 v46, v[56:59] offset:{LC-LA+8192}")
    A("v_lshlrev_b32 v47, 2, v0")
    A(f"ds_write_b32 v47, v48 offset:{BINCNT}")
    A(f"ds_write_b32 v47, v48 offset:{BINCNT+128}")
    A(f"ds_write_b32 v47, v48 offset:{CURSOR}")
    A("s_mov_b64 exec, s[50:51]")
    A("s_waitcnt lgkmcnt(0)")
    A("s_barrier")
    A("s_waitcnt vmcnt(20)")
    T.mark()
    A("v_lshrrev_b32 v60, 1, v0")
    A("v_and_b32 v61, 1, v0")
    A("v_lshrrev_b32 v62, 16, v3")
    A(f"v_subrev_u32 v63, s{sC0}, v60")
    A(f"v_cmp_gt_u32 vcc, s{sSTEP}, v63")
    A.nop(2)
    A("v_cndmask_b32 v62, 0, v62, vcc")
    A("v_and_b32 v63, 0xffff, v3")
    A(f"v_mul_u32_u24 v64, {CH}, v60")
    A("v_add3_u32 v64, v64, v63, v61")
    A("v_lshlrev_b32 v64, 3, v64")
    A(f"s_mov_b32 s48, {WS_REC:#x}")
    A.label("K2_PA")
    for k in range(4):
        A(f"v_add_u32 v65, {2*k}, v61")
        A(f"v_cmp_gt_u32 s[{50+2*k}:{51+2*k}], v62, v65")
    A.nop(4)
    A("s_cmp_eq_u64 s[50:51], 0")
    A("s_cbranch_scc1 K2_PA_END")
    for k in range(4):
        A(f"buffer_load_dwordx2 v[{66+2*k}:{67+2*k}], v64, s[{sWS}:{sWS+3}], s48 offen offset:{16*k}")
    for k in range(4):
        A(f"s_bcnt1_i32_b64 s{58+k}, s[{50+2*k}:{51+2*k}]")
    A("s_add_u32 s62, s58, s59\ns_add_u32 s63, s62, s60\ns_add_u32 s49, s63, s61")
    A("s_mov_b64 s[78:79], exec")
    A("s_mov_b64 exec, 1")
    A("v_mov_b32 v74, s49")
    A("v_mov_b32 v75, 0")
    A(f"ds_add_rtn_u32 v74, v75, v74 offset:{CURSOR}")
    A("s_waitcnt lgkmcnt(0)")
    A("v_readfirstlane_b32 s49, v74")
    A("s_mov_b64 exec, s[78:79]")
    A.nop(4)
    offs=["0","s58","s62","s63"]
    for k in range(4):
        A(f"v_mbcnt_lo_u32_b32 v{76+k}, s{50+2*k}, 0")
        A(f"v_mbcnt_hi_u32_b32 v{76+k}, s{51+2*k}, v{76+k}")
        A(f"v_add_u32 v{76+k}, s49, v{76+k}")
        if k: A(f"v_add_u32 v{76+k}, {offs[k]}, v{76+k}")
    A("s_waitcnt vmcnt(0)")
    A("v_mov_b32 v80, 1")
    for k in range(4):
        w0,w1=66+2*k,67+2*k
        A(f"s_mov_b64 exec, s[{50+2*k}:{51+2*k}]")
        A(f"v_lshrrev_b32 v81, 16, v{w0}")
        A(f"v_and_b32 v{w0}, 0xffff, v{w0}")
        A("v_mul_u32_u24 v82, 41, v81")
        A("v_lshrrev_b32 v82, 10, v82")
        A("v_mul_u32_u24 v83, 25, v82")
        A("v_sub_u32 v83, v81, v83")
        A(f"v_mul_u32_u24 v84, 335, v{w0}")
        A("v_lshrrev_b32 v84, 19, v84")
        A("v_lshl_add_u32 v84, v82, 4, v84")
        A(f"v_lshl_or_b32 v{w0}, v83, 15, v{w0}")
        A(f"v_lshl_or_b32 v{w0}, v84, 20, v{w0}")
        A("v_lshlrev_b32 v84, 2, v84")
        A(f"ds_add_rtn_u32 v{86+k}, v84, v80 offset:{BINCNT}")
        A("v_lshlrev_b32 v81, 2, v81")
        A(f"ds_add_u32 v81, v80 offset:{NODECNT}")
    A("s_mov_b64 exec, s[78:79]")
    A("s_waitcnt lgkmcnt(0)")
    for k in range(4):
        w0,w1=66+2*k,67+2*k
        A(f"s_mov_b64 exec, s[{50+2*k}:{51+2*k}]")
        A(f"v_cmp_gt_u32 vcc, {CAP}, v{76+k}")
        A("s_and_b64 exec, exec, vcc")
        A(f"v_lshl_or_b32 v{w1}, v{86+k}, 19, v{w1}")
        A(f"v_lshlrev_b32 v81, 3, v{76+k}")
        A(f"v_add_u32 v81, {RAW}, v81")
        A(f"ds_write_b64 v81, v[{w0}:{w1}]")
    A("s_mov_b64 exec, s[78:79]")
    A("v_add_u32 v61, 8, v61")
    A("v_add_u32 v64, 64, v64")
    A("s_branch K2_PA")
    A.label("K2_PA_END")
    A("s_waitcnt vmcnt(0) lgkmcnt(0)")
    A("s_barrier")
    T.mark()
    A("v_mov_b32 v75, 0")
    A(f"ds_read_b32 v74, v75 offset:{CURSOR}")
    A("s_waitcnt lgkmcnt(0)")
    A(f"v_readfirstlane_b32 s{sTOT}, v74")
    A.nop(4)
    A(f"s_cmp_le_u32 s{sTOT}, {MAXTOT}")
    A("s_cbranch_scc1 K2_FIT")
    A(f"s_min_u32 s{sTOT}, s{sTOT}, {CAP}")
    A(f"s_cmp_eq_u32 s{sSTEP}, 1")
    A("s_cbranch_scc1 K2_FIT")
    A(f"s_mov_b32 s{sSTEP}, 1")
    A(f"s_mov_b32 s{sC0}, 0")
    A("s_barrier")
    A("v_mov_b32 v37, 0")
    A("v_lshlrev_b32 v38, 2, v0")
    A("v_cmp_gt_u32 vcc, 128, v0")
    A("s_and_saveexec_b64 s[50:51], vcc")
    A(f"ds_write_b32 v38, v37 offset:{NODECNT}")
    A("s_mov_b64 exec, s[50:51]")
    A("s_branch K2_BATCH")
    A.label("K2_FIT")
    A("s_cmp_lg_u32 s3, 0")
    A("s_cbranch_scc1 K2_NOPFX")
    A("v_lshlrev_b32 v60, 2, v1")
    A(f"ds_read_b32 v61, v60 offset:{BINCNT}")
    A("s_waitcnt lgkmcnt(0)")
    A("v_mov_b32 v62, v61")
    for sh in (1,2,4,8):
        A.nop(2)
        A(f"v_add_u32_dpp v62, v62, v62 row_shr:{sh} row_mask:0xf bank_mask:0xf bound_ctrl:0")
    A.nop(1)
    for g in range(4): A(f"v_readlane_b32 s{50+g}, v62, {16*g+15}")
    A.nop(4)
    for g in range(4):
        A(f"s_add_u32 s{50+g}, s{50+g}, 31")
        A(f"s_lshr_b32 s{50+g}, s{50+g}, 5")
    A("s_mov_b32 s54, 0\ns_mov_b32 s55, s50\ns_add_u32 s56, s55, s51\ns_add_u32 s57, s56, s52")
    A("v_sub_u32 v62, v62, v61")
    A("v_mov_b32 v63, 0")
    for g in range(1,4):
        A(f"s_lshl_b32 s58, s{54+g}, 5")
        A("v_mov_b32 v64, s58")
        A(f"v_cmp_le_u32 vcc, {16*g}, v1")
        A.nop(2)
        A("v_cndmask_b32 v63, v63, v64, vcc")
    A("v_add_u32 v62, v62, v63")
    A(f"ds_write_b32 v60, v62 offset:{BINBASE}")
    A("s_mov_b64 s[78:79], exec")
    A("s_mov_b64 exec, 1")
    for i in range(8): A(f"v_mov_b32 v{64+i}, s{50+i}")
    A("v_mov_b32 v72, 0")
    A(f"ds_write_b128 v72, v[64:67] offset:{GINFO}")
    A(f"ds_write_b128 v72, v[68:71] offset:{GINFO+16}")
    A("s_mov_b64 exec, s[78:79]")
    A.label("K2_NOPFX")
    A(f"s_cmp_lg_u32 s{sBN}, 0")
    A("s_cbranch_scc1 K2_BN_DONE")
    A(f"s_mov_b32 s{sBN}, 1")
    A("v_and_b32 v36, 0x13, v7")
    A("v_and_b32 v37, 4, v7")
    A("v_lshlrev_b32 v37, 1, v37")
    A("v_and_b32 v38, 8, v7")
    A("v_lshrrev_b32 v38, 1, v38")
    A("v_or3_b32 v36, v36, v37, v38")
    A(f"s_mul_i32 s50, s{sG}, 25")
    A("v_add_u32 v36, s50, v36")
    A("v_and_b32 v37, 15, v36")
    A("v_xor_b32 v37, v37, v44")
    A("v_lshlrev_b32 v37, 4, v37")
    A("v_lshlrev_b32 v36, 8, v36")
    A(f"v_add_u32 v36, {XL}, v36")
    Xo=160
    for s in range(8):
        A(f"v_xor_b32 v38, {32*s}, v37")
        A("v_add_u32 v38, v36, v38")
        A(f"ds_read_b128 v[{Xo+4*s}:{Xo+4*s+3}], v38")
    A("v_lshlrev_b32 v39, 4, v1")
    A(f"s_lshl_b32 s50, s{sHW}, 15")
    A(f"s_add_u32 s50, s50, {STG}")
    A("v_add_u32 v39, s50, v39")
    A(f"s_mov_b32 s51, {f2u(SCALE):#x}")
    Wo=48; acc=80
    for k in range(4):
        for s in range(8):
            A(f"ds_read_b128 v[{Wo+4*s}:{Wo+4*s+3}], v39 offset:{(k*8+s)*1024}")
        A("s_waitcnt lgkmcnt(0)")
        for s in range(8):
            c="0" if s==0 else f"v[{acc}:{acc+15}]"
            A(f"v_mfma_f32_32x32x16_bf16 v[{acc}:{acc+15}], v[{Xo+4*s}:{Xo+4*s+3}], v[{Wo+4*s}:{Wo+4*s+3}], {c}")
        A(f"v_lshlrev_b32 v{32+k}, 16, v{32+k}")
        A.nop(16)
        for r in range(16):
            A(f"v_add_f32 v{acc+r}, v{acc+r}, v{32+k}")
            A(f"v_mul_f32 v{acc+r}, s51, v{acc+r}")
        for i in range(8):
            A(f"v_cvt_pk_bf16_f32 v{vBn+8*k+i}, v{acc+2*i}, v{acc+2*i+1}")
    A.label("K2_BN_DONE")
    A("s_waitcnt lgkmcnt(0)")
    A("s_barrier")
    T.mark()
    for it in range(4):
        A(f"v_add_u32 v60, {512*it}, v0")
        A(f"v_cmp_gt_u32 vcc, s{sTOT}, v60")
        A("s_and_saveexec_b64 s[50:51], vcc")
        A("v_lshlrev_b32 v61, 3, v60")
        A(f"v_add_u32 v61, {RAW}, v61")
        A("ds_read_b64 v[62:63], v61")
        A("s_waitcnt lgkmcnt(0)")
        A("v_bfe_u32 v64, v62, 20, 6")
        A("v_lshlrev_b32 v64, 2, v64")
        A(f"ds_read_b32 v65, v64 offset:{BINBASE}")
        A("v_lshrrev_b32 v66, 19, v63")
        A("v_bfe_u32 v67, v62, 15, 5")
        A("v_and_b32 v68, 0x7fff, v62")
        A("v_lshlrev_b32 v68, 9, v68")
        if 'nogather' in ABL: A("v_mov_b32 v68, 0")
        A("v_and_b32 v69, 0x7ffff, v63")
        A("v_lshlrev_b32 v69, 5, v69")
        if 'noe' in ABL: A("v_mov_b32 v69, 0")
        A("v_lshl_or_b32 v69, v67, 24, v69")
        A(f"v_mul_u32_u24 v70, {IDS}, v67")
        A("s_waitcnt lgkmcnt(0)")
        A("v_add_u32 v65, v65, v66")
        A("v_and_b32 v71, 7, v65")
        A("v_lshlrev_b32 v71, 2, v71")
        A("v_bfe_u32 v72, v65, 3, 2")
        A("v_and_b32 v73, 0xffffffe0, v65")
        A("v_add3_u32 v71, v71, v72, v73")
        A("v_lshlrev_b32 v71, 2, v71")
        A("v_lshlrev_b32 v65, 2, v65")
        A(f"ds_write_b32 v71, v68 offset:{LA}")
        A(f"ds_write_b32 v71, v70 offset:{LC}")
        A(f"ds_write_b32 v65, v69 offset:{LB}")
        A("s_mov_b64 exec, s[50:51]")
    A("s_waitcnt lgkmcnt(0)")
    A("s_barrier")
    A(f"s_lshl_b32 s50, s{sG}, 2")
    A("v_mov_b32 v60, s50")
    A(f"ds_read_b32 v61, v60 offset:{GINFO}")
    A(f"ds_read_b32 v62, v60 offset:{GINFO+16}")
    A("s_waitcnt lgkmcnt(0)")
    A(f"v_readfirstlane_b32 s{sCNT}, v61")
    A("v_readfirstlane_b32 s51, v62")
    A.nop(4)
    A(f"s_min_u32 s{sCNT}, s{sCNT}, 66")
    A("s_min_u32 s51, s51, 66")
    A(f"s_cmp_eq_u32 s{sCNT}, 0")
    A("s_cbranch_scc1 K2_LOOP_DONE")
    L=Loop(A)
    A("s_lshl_b32 s51, s51, 7")
    A("v_lshrrev_b32 v60, 3, v1")
    A("v_lshlrev_b32 v60, 4, v60")
    A(f"v_add_u32 v{vLAa}, s51, v60")
    A(f"v_add_u32 v{vLAa}, {LA}, v{vLAa}")
    A("v_lshlrev_b32 v60, 2, v7")
    A(f"v_add_u32 v{vLBa}, s51, v60")
    A(f"v_add_u32 v{vLBa}, {LB}, v{vLBa}")
    A("v_lshrrev_b32 v60, 2, v1")
    A("v_and_b32 v60, 3, v60")
    A("v_lshrrev_b32 v61, 5, v1")
    A("v_lshl_add_u32 v60, v61, 2, v60")
    A("v_lshlrev_b32 v60, 4, v60")
    A(f"v_add_u32 v{vLCa}, s51, v60")
    A(f"v_add_u32 v{vLCa}, {LC}, v{vLCa}")
    L.ds(f"ds_read_b128 v[{vDA}:{vDA+3}], v{vLAa}","LA")
    L.ds(f"ds_read_b32 v{vLBv}, v{vLBa}","LB")
    L.wait("LB"); da_add(A); lb_decode(A)
    for i in range(4): dma(A,0,sSO0,i)
    e_load(A)
    for i in range(4): dma(A,1,sSO1,i)
    L.ds(f"ds_read_b128 v[{vDA}:{vDA+3}], v{vLAa} offset:128","LA")
    pt_reads(L)
    L.ds(f"ds_read_b32 v{vLBv}, v{vLBa} offset:128","LB")
    L.wait("LB"); da_add(A); lb_decode(A)
    A("s_waitcnt vmcnt(4)")
    ag_reads(L,0)
    e_mov(A)
    L.wait("Ag")
    for i in range(4): dma(A,0,sSO0,i)
    e_load(A)
    L.ds(f"ds_read_b128 v[{vPTa}:{vPTa+3}], v{vLCa}","LC")
    L.wait("LC"); pta_add(A)
    for m in zq(0): A(m)
    A(f"v_add_u32 v{vLAa}, 256, v{vLAa}")
    A(f"v_add_u32 v{vLBa}, 256, v{vLBa}")
    A(f"v_add_u32 v{vLCa}, 128, v{vLCa}")
    for i in range(4):
        A(f"v_mov_b32 v{vH+4+i}, 0")
        A(f"v_mov_b32 v{vPT+4+i}, 0")
    A.nop(16)
    T.mark()
    A(".p2align 6")
    A.label("K2_LOOP")
    L=Loop(A)
    for k in range(4): nstep(A,L,k)
    A(f"s_sub_u32 s{sCNT}, s{sCNT}, 1")
    A(f"s_cmp_lg_u32 s{sCNT}, 0")
    A("s_cbranch_scc1 K2_LOOP")
    A.nop(2)
    A(mfma(vS+48,vH+4,vPT+4,vS+48))
    A.label("K2_LOOP_DONE")
    T.mark()
    A("s_waitcnt vmcnt(0) lgkmcnt(0)")
    A(f"s_add_u32 s{sC0}, s{sC0}, s{sSTEP}")
    A(f"s_cmp_lt_u32 s{sC0}, 256")
    A("s_cbranch_scc0 K2_EPI")
    A("s_barrier")
    A("s_branch K2_BATCH")
    A.label("K2_EPI")
    A("s_barrier")
    A("s_and_b32 s50, s3, 3")
    A("s_lshl_b32 s51, s50, 14")
    A(f"s_add_u32 s51, s51, {WS_W2F:#x}")
    A("v_lshlrev_b32 v6, 4, v1")
    for i in range(16):
        A(f"s_add_u32 s52, s51, {(i//4)*4096}")
        A(f"buffer_load_dwordx4 v[{64+4*i}:{67+4*i}], v6, s[{sWS}:{sWS+3}], s52 offen offset:{(i%4)*1024}")
    A("v_lshrrev_b32 v44, 5, v1")
    A("v_lshlrev_b32 v45, 3, v44")
    A("s_lshl_b32 s52, s50, 6")
    for g4 in range(4):
        A(f"buffer_load_dwordx2 v[{32+2*g4}:{33+2*g4}], v45, s[{sB2}:{sB2+3}], s52 offen offset:{g4*16}")
    A.nop(16)
    A(f"s_mov_b32 s53, {f2u(ISCALE):#x}")
    A(f"s_lshl_b32 s54, s{sG}, 3")
    A(f"s_lshl_b32 s55, s{sHW}, 2")
    A("s_add_u32 s54, s54, s55")
    A("s_lshl_b32 s54, s54, 11")
    A(f"s_add_u32 s54, s54, {STG}")
    A("v_add_u32 v46, s54, v6")
    for k in range(4):
        for r in range(16): A(f"v_mul_f32 v{vS+16*k+r}, s53, v{vS+16*k+r}")
        for i in range(8): A(f"v_cvt_pk_bf16_f32 v{48+i}, v{vS+16*k+2*i}, v{vS+16*k+2*i+1}")
        A(f"ds_write_b128 v46, v[48:51] offset:{k*2048}")
        A(f"ds_write_b128 v46, v[52:55] offset:{k*2048+1024}")
        A("s_waitcnt lgkmcnt(0)")
    A("s_barrier")
    T.mark()
    A("s_waitcnt vmcnt(0)")
    for g4 in range(4):
        for h in range(2):
            A(f"v_lshlrev_b32 v{8+4*g4+2*h}, 16, v{32+2*g4+h}")
            A(f"v_and_b32 v{8+4*g4+2*h+1}, 0xffff0000, v{32+2*g4+h}")
    A("s_lshr_b32 s55, s3, 2")
    A(f"s_add_u32 s60, s{sN0}, {NPW}")
    A(f"s_min_u32 s60, s60, {N}")
    for gi in range(2):
        A("s_lshl_b32 s56, s55, 1")
        A(f"s_add_u32 s56, s56, {gi}")
        A("s_lshl_b32 s57, s56, 14")
        A(f"s_add_u32 s57, s57, {STG}")
        A("v_add_u32 v46, s57, v6")
        for i in range(16):
            A(f"ds_read_b128 v[{128+4*i}:{131+4*i}], v46 offset:{i*1024}")
        A("s_mul_i32 s58, s56, 25")
        A("v_add_u32 v47, s58, v7")
        A("v_lshlrev_b32 v48, 2, v47")
        A(f"ds_read_b32 v49, v48 offset:{NODECNT}")
        A("s_waitcnt lgkmcnt(0)")
        acc=192
        for i in range(16):
            c="0" if i==0 else f"v[{acc}:{acc+15}]"
            A(f"v_mfma_f32_32x32x16_bf16 v[{acc}:{acc+15}], v[{64+4*i}:{67+4*i}], v[{128+4*i}:{131+4*i}], {c}")
        A("v_cvt_f32_u32 v49, v49")
        A.nop(16)
        for r in range(16): A(f"v_fma_f32 v{acc+r}, v49, v{8+r}, v{acc+r}")
        for i in range(8): A(f"v_cvt_pk_bf16_f32 v{208+i}, v{acc+2*i}, v{acc+2*i+1}")
        A(f"v_add_u32 v50, s{sN0}, v47")
        A("v_cmp_gt_u32 vcc, s60, v50")
        A("v_cmp_gt_u32 s[58:59], 25, v7")
        A.nop(2)
        A("s_and_b64 vcc, vcc, s[58:59]")
        A("s_and_saveexec_b64 s[58:59], vcc")
        A(f"s_cbranch_execz K2_ST{gi}")
        A("v_lshlrev_b32 v50, 8, v50")
        A("v_add_u32 v50, v50, v45")
        for g4 in range(4):
            A(f"buffer_store_dwordx2 v[{208+2*g4}:{209+2*g4}], v50, s[{sOUT}:{sOUT+3}], s52 offen offset:{g4*16}")
        A.label(f"K2_ST{gi}")
        A("s_mov_b64 exec, s[58:59]")
        A.nop(2)
    if diag:
        A("s_waitcnt vmcnt(0)")
        T.mark()
        T.dump(1,76,77)
    A.label("K2_END")
    A("s_endpgm")
    return name, A.text(), kd(name,256,102 if diag else 84), K2_LDS
```

```python
from common import *
import fused as F
from fused import Loop, mfma, nstep, dma, zq, ag_reads, da_add, lb_decode, pt_reads, e_load, e_mov, pta_add, SDWA
WS_CS64=0x1100000; WS_FLAGA=0x1190000; WS_WCF2=0x1194000; WS_W2F2=0x11A0000
HIST=0; PRE=1024; BINCNT=2048; BINBASE=2304; NODECNT=2560; GINFO=3072; OVF=3104
IDT=3328; IDS=80
XL=6400; WA=XL+25600; WB=WA+65536; LDS_TOTAL=WB+65536
RECL=WB+32768
LCAP=2176
LA=40960; LB=LA+LCAP*4; LC=LB+LCAP*4
STG=71680
MAXTOT=1920; DUMMY=31
assert LDS_TOTAL<=163840 and XL%256==0 and WA%256==0 and WB%256==0
sX,sE,sW1,sOUT,sA,sWS,sSD=F.sX,F.sE,F.sW1,F.sOUT,F.sA,F.sWS,F.sSD
sN0,sG,sHW,sSO0,sSO1,sM0,sCNT,sC0,sSTEP,sMASK,sNONCE=F.sN0,F.sG,F.sHW,F.sSO0,F.sSO1,F.sM0,F.sCNT,F.sC0,F.sSTEP,F.sMASK,F.sNONCE
vAgA,vDA,vLAa,vLBa,vLCa,vLBv,vPTa=F.vAgA,F.vDA,F.vLAa,F.vLBa,F.vLCa,F.vLBv,F.vPTa
vH,vPT,vSel,vWc,vBn,vZ,vS=F.vH,F.vPT,F.vSel,F.vWc,F.vBn,F.vZ,F.vS
F.vH16=28; F.vPTl=29; F.vPtB=30; F.vC80=31
vLAo=32; vLBo=33; vLCo=34; vAgB=35; F.vLP0=36; F.vLP1=37; vTRA=38; vTRB=39
vXAo=40; vNU=41; vB1o=42

def unit(hw,k,j): return 128*hw+16*(j>>2)+4*k+(j&3)

def const_table():
    ch=[[[0]*4 for _ in range(64)] for _ in range(6)]
    for l in range(64):
        half=l>>5; e=l&31
        for qq in range(2):
            vals=[0x3f80 if e==4*jj+2*qq+half else 0 for jj in range(8)]
            for i in range(4): ch[qq][l][i]=vals[2*i]|(vals[2*i+1]<<16)
        r=(l>>2)&3; c=l&3; g1=(l>>4)&1
        ch[2][l]=[LA+(l>>3)*16, LB+(((e&7)*4+(e>>3))*4), LC+(4*half+r)*16, e*128+((half^((e>>1)&7))*16)]
        ch[3][l]=[half*16, IDT+(16*g1+4*c)*2, IDT+half*16, IDS]
        lp0=((l&7)^(l>>4))*16
        g=l>>4
        f=r+4*(g&1)
        tra=WA+(8*g+r)*512+f*32+c*8
        trb=WB+(8*half+r)*512+(((2*(4*g1+c))^(r&1))*16)
        ch[4][l]=[lp0, lp0^64, tra, trb]
        m=l&15; kq=l>>4
        nu=(e&0x13)|((e&4)<<1)|((e&8)>>1)
        ch[5][l]=[XL+m*256+((kq^m)*16), nu, (16*(e>>2)+(e&3))*2, 0]
    words=[]
    for c in ch:
        for l in c: words+=l
    idt=[0]*(768)
    for row in range(DUMMY):
        idt[row*20+row//2]=0x3f80<<(16*(row&1))
    return words+idt

def gen(diag=False):
    A=Asm(); T=Stamps(A,diag)
    name=KNAME+"_kernel"
    A(f".globl {name}\n.p2align 8\n.type {name},@function")
    A.label(name)
    A("s_cmp_ge_u32 s2, 256")
    A("s_cbranch_scc1 V_END")
    A("s_load_dwordx16 s[64:79], s[0:1], 0")
    A("s_load_dwordx4 s[80:83], s[0:1], 64")
    A("s_load_dwordx2 s[60:61], s[0:1], 80")
    A("s_getpc_b64 s[4:5]")
    A.label("V_PC")
    A("s_add_u32 s4, s4, V_TAB-V_PC")
    A("s_addc_u32 s5, s5, 0")
    A("v_and_b32 v1, 63, v0")
    A("v_lshrrev_b32 v2, 6, v0")
    A("v_lshlrev_b32 v3, 4, v0")
    A("v_readfirstlane_b32 s3, v2")
    A("v_lshlrev_b32 v4, 4, v1")
    A("v_and_b32 v7, 31, v1")
    A("v_lshrrev_b32 v6, 5, v1")
    A("v_mov_b32 v44, 0")
    A("v_lshlrev_b32 v45, 2, v1")
    A(f"s_mul_i32 s48, s2, {CH*4}")
    A(f"s_mul_i32 s{sN0}, s2, {NPW}")
    A("s_cmp_lt_u32 s3, 4")
    A("s_cbranch_scc0 V_H")
    A("s_lshl_b32 s49, s3, 8")
    A("v_add_u32 v45, s49, v45")
    A(f"ds_write_b32 v45, v44 offset:{HIST}")
    A.label("V_H")
    A("s_waitcnt lgkmcnt(0)")
    T.mark(0)
    srd(A,sSD,70,71,E*4)
    A(f"buffer_load_dwordx4 v[64:67], v3, s[{sSD}:{sSD+3}], s48 offen")
    srd(A,sX,68,69,E*4)
    A(f"buffer_load_dwordx4 v[68:71], v3, s[{sX}:{sX+3}], s48 offen")
    srd(A,sX,64,65,N*256)
    srd(A,sW1,72,73,272*512)
    A("v_lshrrev_b32 v46, 4, v1")
    A("v_and_b32 v47, 15, v1")
    A("v_xor_b32 v47, v47, v46")
    A("s_and_b32 s49, s3, 3")
    A("s_lshl_b32 s49, s49, 2")
    A("v_xor_b32 v47, s49, v47")
    A("v_lshlrev_b32 v47, 4, v47")
    A("v_lshl_add_u32 v47, v46, 8, v47")
    A(f"s_lshl_b32 s50, s{sN0}, 8")
    A("s_lshl_b32 s49, s3, 10")
    A("s_add_u32 s50, s50, s49")
    A(f"s_add_u32 s51, s49, {XL}")
    for m in range(3):
        A(f"s_add_u32 m0, s51, {m*8192}")
        A(f"s_add_u32 s52, s50, {m*8192}")
        A(f"buffer_load_dwordx4 v47, s[{sX}:{sX+3}], s52 offen lds")
    A("s_cmp_lg_u32 s3, 0")
    A("s_cbranch_scc1 V_X4")
    A(f"s_mov_b32 m0, {XL+24*1024}")
    A(f"s_add_u32 s52, s50, {24*1024}")
    A(f"buffer_load_dwordx4 v47, s[{sX}:{sX+3}], s52 offen lds")
    A.label("V_X4")
    A("v_lshlrev_b32 v48, 1, v6")
    A("v_xor_b32 v48, v48, v7")
    A("v_lshlrev_b32 v48, 4, v48")
    A("v_lshl_add_u32 v48, v6, 9, v48")
    A("v_xor_b32 v49, 64, v48")
    A("v_xor_b32 v50, 128, v48")
    A("v_xor_b32 v51, 192, v48")
    A("s_lshl_b32 s49, s3, 13")
    A(f"s_add_u32 s51, s49, {WA}")
    for ii in range(8):
        A(f"s_add_u32 m0, s51, {ii*1024}")
        A(f"s_add_u32 s52, s49, {ii*1024}")
        A(f"buffer_load_dwordx4 v{48+(ii&1)+2*(ii>>2)}, s[{sW1}:{sW1+3}], s52 offen lds")
    for c,dst in ((0,104),(1,108),(2,32),(3,28)):
        A(f"global_load_dwordx4 v[{dst}:{dst+3}], v4, s[4:5] offset:{c*1024}")
    A("s_add_u32 s6, s4, 4096\ns_addc_u32 s7, s5, 0")
    for c,dst in ((4,36),(5,40)):
        A(f"global_load_dwordx4 v[{dst}:{dst+3}], v4, s[6:7] offset:{(c-4)*1024}")
    srd(A,sWS,60,61,WS_END)
    A("s_cmp_lg_u32 s3, 7")
    A("s_cbranch_scc1 V_W7")
    A("s_cmp_lg_u32 s2, 0")
    A("s_cbranch_scc1 V_NN")
    A("s_memrealtime s[48:49]")
    A("s_waitcnt lgkmcnt(0)")
    A("s_or_b32 s48, s48, 1")
    A("v_mov_b32 v52, s48")
    A("v_mov_b32 v53, 0")
    A("s_mov_b64 exec, 1")
    A("global_store_dword v53, v52, s[82:83] sc1")
    A("s_mov_b64 exec, -1")
    A.label("V_NN")
    for i in range(3):
        A(f"s_mov_b32 m0, {IDT+i*1024}")
        A(f"v_add_u32 v52, {2048+i*1024}, v4")
        A(f"global_load_lds_dwordx4 v52, s[6:7]")
    srd(A,sSD,76,77,256*256)
    A("s_and_b32 s48, s2, 3")
    A("s_lshl_b32 s48, s48, 4")
    A("v_lshrrev_b32 v52, 2, v1")
    A("v_add_u32 v52, s48, v52")
    A("v_and_b32 v53, 3, v1")
    A("v_and_b32 v54, 31, v52")
    A("v_lshrrev_b32 v55, 5, v52")
    A("s_lshr_b32 s48, s2, 2")
    A("s_bfe_u32 s49, s48, 0x10003")
    A("s_lshl_b32 s49, s49, 7")
    A("s_bfe_u32 s50, s48, 0x20001")
    A("s_lshl_b32 s50, s50, 2")
    A("s_add_u32 s49, s49, s50")
    A("s_and_b32 s50, s48, 1")
    A("s_lshl_b32 s50, s50, 6")
    A("s_add_u32 s49, s49, s50")
    A("v_lshrrev_b32 v56, 1, v53")
    A("v_lshlrev_b32 v56, 5, v56")
    A("v_lshl_add_u32 v56, v55, 4, v56")
    A("v_and_b32 v57, 1, v53")
    A("v_lshl_add_u32 v56, v57, 1, v56")
    A("v_add_u32 v56, s49, v56")
    A("s_lshr_b32 s50, s48, 4")
    A("s_lshl_b32 s50, s50, 6")
    A("v_lshlrev_b32 v56, 8, v56")
    A("v_lshl_add_u32 v56, v54, 1, v56")
    A(f"buffer_load_ushort v92, v56, s[{sSD}:{sSD+3}], s50 offen")
    A(f"buffer_load_ushort v93, v56, s[{sSD}:{sSD+3}], s50 offen offset:256")
    A("s_cmp_ge_u32 s2, 32")
    A("s_cbranch_scc1 V_W7")
    A("s_lshr_b32 s49, s48, 2")
    A("s_lshl_b32 s49, s49, 7")
    A("s_and_b32 s50, s48, 3")
    A("s_lshl_b32 s50, s50, 2")
    A("s_add_u32 s49, s49, s50")
    A("v_lshrrev_b32 v56, 2, v54")
    A("v_lshlrev_b32 v56, 4, v56")
    A("v_and_b32 v57, 3, v54")
    A("v_add3_u32 v56, v56, v57, s49")
    A("v_lshlrev_b32 v57, 3, v55")
    A("v_lshl_add_u32 v57, v53, 1, v57")
    A("v_add_u32 v57, 256, v57")
    A("v_lshlrev_b32 v57, 9, v57")
    A("v_lshl_add_u32 v57, v56, 1, v57")
    A(f"buffer_load_ushort v94, v57, s[{sW1}:{sW1+3}], 0 offen")
    A(f"buffer_load_ushort v95, v57, s[{sW1}:{sW1+3}], 0 offen offset:512")
    A.label("V_W7")
    A("v_xor_b32 v52, v6, v7")
    A("v_lshlrev_b32 v52, 4, v52")
    A("v_lshl_add_u32 v5, v6, 9, v52")
    A("s_lshl_b32 s49, s3, 12")
    A(f"s_add_u32 s51, s49, {WB}")
    A(f"s_add_u32 s50, s49, 65536")
    for ii in range(4):
        A(f"s_add_u32 m0, s51, {ii*1024}")
        A(f"s_add_u32 s52, s50, {ii*1024}")
        A(f"buffer_load_dwordx4 v5, s[{sW1}:{sW1+3}], s52 offen lds")
    A(f"s_lshr_b32 s{sG}, s3, 1")
    A(f"s_and_b32 s{sHW}, s3, 1")
    A(f"s_mul_i32 s54, s2, {CH}")
    A(f"s_sub_u32 s55, {E}, s54")
    A(f"s_min_u32 s55, s55, {CH}")
    A("v_lshlrev_b32 v52, 2, v0")
    A("s_mov_b32 s48, 42800")
    A(f"s_mov_b32 s49, {(-NPW)&0xffffffff:#x}")
    A("v_mov_b32 v53, 1")
    A("v_add_lshl_u32 v54, v52, s54, 5")
    A("s_barrier")
    A("v_cmp_gt_u32 vcc, s55, v52")
    A("s_and_saveexec_b64 s[56:57], vcc")
    A("s_mov_b64 s[58:59], exec")
    A("s_waitcnt vmcnt(21)")
    T.mark()
    for k in range(4):
        A(f"v_mul_u32_u24 v{72+k}, s48, v{64+k}")
        A(f"v_lshrrev_b32 v{72+k}, 22, v{72+k}")
        A(f"v_lshlrev_b32 v{88+k}, 2, v{72+k}")
        A(f"ds_add_rtn_u32 v{76+k}, v{88+k}, v53 offset:{HIST}")
    for k in range(4):
        d=64+k; s=68+k; b=72+k
        A(f"v_mad_i32_i24 v55, v{b}, s49, v{d}")
        A("v_mul_u32_u24 v56, 41, v55")
        A("v_lshrrev_b32 v56, 10, v56")
        A("v_mad_u32_u24 v55, v56, 7, v55")
        A(f"v_mul_u32_u24 v57, 335, v{s}")
        A("v_lshrrev_b32 v57, 19, v57")
        A("v_lshl_add_u32 v57, v56, 4, v57")
        A(f"v_lshlrev_b32 v{80+2*k}, 9, v{s}")
        A(f"v_lshl_or_b32 v{80+2*k}, v55, 24, v{80+2*k}")
        A(f"v_add_u32 v56, {32*k}, v54")
        A(f"v_lshl_or_b32 v{81+2*k}, v57, 24, v56")
    A("s_mov_b64 exec, s[56:57]")
    A("s_waitcnt lgkmcnt(0)")
    A("s_barrier")
    A("s_cmp_lg_u32 s3, 7")
    A("s_cbranch_scc1 V_B")
    A(f"ds_read_b128 v[48:51], v4 offset:{HIST}")
    A("s_waitcnt lgkmcnt(0)")
    A("v_add_u32 v55, v48, v49")
    A("v_add_u32 v56, v55, v50")
    A("v_add_u32 v57, v56, v51")
    A("v_mov_b32 v58, v57")
    for sh in (1,2,4,8):
        A.nop(2)
        A(f"v_add_u32_dpp v58, v58, v58 row_shr:{sh} row_mask:0xf bank_mask:0xf bound_ctrl:0")
    A.nop(2)
    A("v_add_u32_dpp v58, v58, v58 row_bcast:15 row_mask:0xa bank_mask:0xf")
    A.nop(2)
    A("v_add_u32_dpp v58, v58, v58 row_bcast:31 row_mask:0xc bank_mask:0xf")
    A("v_sub_u32 v60, v58, v57")
    A("v_add_u32 v61, v60, v48")
    A("v_add_u32 v62, v60, v55")
    A("v_add_u32 v63, v60, v56")
    A(f"ds_write_b128 v4, v[60:63] offset:{PRE}")
    for k in range(4): A(f"v_lshl_or_b32 v{96+k}, v{48+k}, 16, v{60+k}")
    A("v_mov_b32 v103, 0")
    A("global_load_dword v102, v103, s[82:83] sc1")
    A.label("V_B")
    A("s_waitcnt lgkmcnt(0)")
    A("s_barrier")
    A("s_mov_b64 exec, s[58:59]")
    for k in range(4): A(f"ds_read_b32 v{72+k}, v{88+k} offset:{PRE}")
    A("s_waitcnt lgkmcnt(0)")
    for k in range(4):
        A(f"v_add_lshl_u32 v{72+k}, v{72+k}, v{76+k}, 3")
        A(f"v_add_u32 v{72+k}, {RECL}, v{72+k}")
        A(f"ds_write_b64 v{72+k}, v[{80+2*k}:{81+2*k}]")
    A("s_mov_b64 exec, s[56:57]")
    A("s_waitcnt vmcnt(0) lgkmcnt(0)")
    A("s_barrier")
    T.mark()
    A(f"v_add_u32 v44, {RECL}, v3")
    A("ds_read_b128 v[64:67], v44")
    A("ds_read_b128 v[68:71], v44 offset:8192")
    A(f"s_mul_i32 s48, s2, {CH*8}")
    A(f"s_add_u32 s48, s48, {WS_REC:#x}")
    A("s_cmp_lg_u32 s3, 7")
    A("s_cbranch_scc1 V_P")
    A("v_lshl_or_b32 v92, v93, 16, v92")
    A("v_lshlrev_b32 v45, 2, v1")
    A("s_lshl_b32 s49, s2, 8")
    A(f"s_add_u32 s50, s49, {WS_W2F2:#x}")
    A(f"buffer_store_dword v92, v45, s[{sWS}:{sWS+3}], s50 offen sc1")
    A("s_cmp_ge_u32 s2, 32")
    A("s_cbranch_scc1 V_P")
    A(f"s_mov_b32 s50, {f2u(SCALE):#x}")
    A("v_lshlrev_b32 v94, 16, v94")
    A("v_lshlrev_b32 v95, 16, v95")
    A("v_mul_f32 v94, s50, v94")
    A("v_mul_f32 v95, s50, v95")
    A("v_cvt_pk_bf16_f32 v94, v94, v95")
    A(f"s_add_u32 s50, s49, {WS_WCF2:#x}")
    A(f"buffer_store_dword v94, v45, s[{sWS}:{sWS+3}], s50 offen sc1")
    A.label("V_P")
    A("s_waitcnt lgkmcnt(0)")
    A(f"buffer_store_dwordx4 v[64:67], v3, s[{sWS}:{sWS+3}], s48 offen sc1")
    A(f"v_cmp_gt_u32 vcc, {CH*8-8192}, v3")
    A("s_and_saveexec_b64 s[50:51], vcc")
    A("s_cbranch_execz V_R2")
    A("s_add_u32 s48, s48, 8192")
    A(f"buffer_store_dwordx4 v[68:71], v3, s[{sWS}:{sWS+3}], s48 offen sc1")
    A.label("V_R2")
    A("s_mov_b64 exec, s[50:51]")
    A("s_cmp_eq_u32 s3, 7")
    A("s_cbranch_scc1 V_G")
    Xo=48; WBa=72; WBb=112; acc=144; AD=208
    A("s_lshl_b32 s48, s3, 12")
    A(f"v_add_u32 v44, s48, v{vXAo}")
    for s in range(4): A(f"v_xor_b32 v{216+s}, {64*s}, v44")
    for s in range(4): A(f"ds_read_b128 v[{Xo+4*s}:{Xo+4*s+3}], v{216+s}")
    for j in range(8): A(f"v_xor_b32 v{AD+j}, {32*j}, v{vTRA}")
    def wr2(buf,T0):
        for tt in range(2):
            Tt=T0+tt
            for s in range(4):
                for h2 in range(2):
                    A(f"ds_read_b64_tr_b16 v[{buf+16*tt+4*s+2*h2}:{buf+16*tt+4*s+2*h2+1}], v{AD+(Tt&7)} offset:{s*16384+h2*2048+(Tt>>3)*256}")
    bufs=[WBa,WBb]
    wr2(WBa,0)
    for pr in range(8):
        A("s_waitcnt lgkmcnt(0)")
        if pr<7: wr2(bufs[(pr+1)&1],2*(pr+1))
        for s in range(4):
            for tt in range(2):
                Tt=2*pr+tt; a=acc+4*Tt
                c="0" if s==0 else f"v[{a}:{a+3}]"
                A(f"v_mfma_f32_16x16x32_bf16 v[{a}:{a+3}], v[{Xo+4*s}:{Xo+4*s+3}], v[{bufs[pr&1]+16*tt+4*s}:{bufs[pr&1]+16*tt+4*s+3}], {c}")
    A.label("V_G")
    A("s_waitcnt vmcnt(0)")
    A("s_barrier")
    T.mark()
    A("s_lshl_b32 s49, s3, 12")
    A(f"s_add_u32 s51, s49, {WB+32768}")
    A(f"s_add_u32 s50, s49, {65536+32768}")
    A("s_cmp_lg_u32 s3, 7")
    A("s_cbranch_scc1 V_F")
    A("s_mov_b32 s52, 0")
    A.label("V_NP")
    A(f"v_readfirstlane_b32 s{sNONCE}, v102")
    A.nop(4)
    A(f"s_cmp_lg_u32 s{sNONCE}, 0")
    A("s_cbranch_scc1 V_NOK")
    A("s_add_u32 s52, s52, 1")
    A("s_cmp_gt_u32 s52, 0x4000")
    A("s_cbranch_scc1 V_NOK")
    A("v_mov_b32 v103, 0")
    A("global_load_dword v102, v103, s[82:83] sc1")
    A("s_waitcnt vmcnt(0)")
    A("s_branch V_NP")
    A.label("V_NOK")
    A("v_lshlrev_b32 v44, 13, v1")
    A("s_lshl_b32 s48, s2, 3")
    A(f"s_add_u32 s48, s48, {WS_CS64:#x}")
    for k in range(4):
        A(f"v_mov_b32 v{46+2*(k&1)}, v{96+k}")
        A(f"v_mov_b32 v{47+2*(k&1)}, s{sNONCE}")
        A(f"buffer_store_dwordx2 v[{46+2*(k&1)}:{47+2*(k&1)}], v44, s[{sWS}:{sWS+3}], s48 offen sc1")
        A("s_add_u32 s48, s48, 2048")
    for ii in range(4):
        A(f"s_add_u32 m0, s51, {ii*1024}")
        A(f"s_add_u32 s52, s50, {ii*1024}")
        A(f"buffer_load_dwordx4 v5, s[{sW1}:{sW1+3}], s52 offen lds")
    A("s_branch V_AS")
    A.label("V_F")
    A(f"s_add_u32 s48, s{sN0}, {NPW}")
    A(f"s_min_u32 s48, s48, {N}")
    A("s_lshl_b32 s48, s48, 9")
    A(f"s_mov_b32 s{sSD}, s60\ns_mov_b32 s{sSD+1}, s61\ns_mov_b32 s{sSD+2}, s48\ns_mov_b32 s{sSD+3}, 0x00020000")
    A("s_lshl_b32 s48, s3, 4")
    A(f"s_add_u32 s48, s48, s{sN0}")
    A("s_lshl_b32 s48, s48, 9")
    A("v_lshrrev_b32 v44, 4, v1")
    A("v_lshlrev_b32 v44, 11, v44")
    A("v_and_b32 v45, 15, v1")
    A("v_lshl_add_u32 v44, v45, 4, v44")
    A(f"s_mov_b32 s53, {f2u(SCALE):#x}")
    n=0
    for r in range(4):
        for hh in range(2):
            p=216+4*(n&3); n+=1
            for t in range(8): A(f"v_mul_f32 v{acc+4*(8*hh+t)+r}, s53, v{acc+4*(8*hh+t)+r}")
            for i in range(4): A(f"v_cvt_pk_bf16_f32 v{p+i}, v{acc+4*(8*hh+2*i)+r}, v{acc+4*(8*hh+2*i+1)+r}")
            A(f"buffer_store_dwordx4 v[{p}:{p+3}], v44, s[{sSD}:{sSD+3}], s48 offen offset:{r*512+hh*256} sc1")
    for ii in range(4):
        A(f"s_add_u32 m0, s51, {ii*1024}")
        A(f"s_add_u32 s52, s50, {ii*1024}")
        A(f"buffer_load_dwordx4 v5, s[{sW1}:{sW1+3}], s52 offen lds")
    A.label("V_AS")
    srd(A,sSD,74,75,512)
    A(f"s_lshl_b32 s48, s{sHW}, 8")
    for k in range(4):
        A(f"buffer_load_ushort v{8+k}, v{vB1o}, s[{sSD}:{sSD+3}], s48 offen offset:{8*k}")
    A(f"s_lshl_b32 s{sSO0}, s{sHW}, 8")
    A(f"s_add_u32 s{sSO1}, s{sSO0}, 128")
    A(f"s_mov_b32 s{sMASK}, 0x00ffffff")
    A(f"s_lshl_b32 s{sM0}, s3, 13")
    A(f"s_add_u32 s{sM0}, s{sM0}, {STG}")
    srd(A,sE,66,67,E*32)
    srd(A,sOUT,80,81,N*256)
    srd(A,sA,60,61,N*512)
    A(f"s_mov_b32 s{sC0}, 0")
    A(f"s_mov_b32 s{sSTEP}, 256")
    A("s_mov_b32 s62, 0")
    A("v_mov_b32 v48, 0")
    A("v_lshlrev_b32 v47, 2, v0")
    A("v_cmp_gt_u32 vcc, 128, v0")
    A("s_and_saveexec_b64 s[50:51], vcc")
    A(f"ds_write_b32 v47, v48 offset:{NODECNT}")
    A("s_mov_b64 exec, s[50:51]")
    vC=44; vCn=45; vOne=46; vTa=47; vTb=56; vG=58; R=64; RK=88
    A.label("V_BATCH")
    A("v_mov_b32 v48, 0\nv_mov_b32 v49, 0\nv_mov_b32 v50, 0\nv_mov_b32 v51, 0")
    dm=DUMMY<<24
    A(f"v_mov_b32 v52, {dm:#x}\nv_mov_b32 v53, {dm:#x}\nv_mov_b32 v54, {dm:#x}\nv_mov_b32 v55, {dm:#x}")
    A(f"v_mov_b32 v60, {DUMMY*IDS}\nv_mov_b32 v61, {DUMMY*IDS}\nv_mov_b32 v62, {DUMMY*IDS}\nv_mov_b32 v63, {DUMMY*IDS}")
    A(f"ds_write_b128 v3, v[48:51] offset:{LA}")
    A(f"ds_write_b128 v3, v[52:55] offset:{LB}")
    A(f"v_add_u32 v47, 8192, v3")
    A(f"ds_write_b128 v47, v[60:63] offset:{LC-8192}")
    A("v_cmp_gt_u32 vcc, 32, v0")
    A("s_and_saveexec_b64 s[50:51], vcc")
    A(f"ds_write_b128 v47, v[48:51] offset:{LA}")
    A(f"ds_write_b128 v47, v[52:55] offset:{LB}")
    A(f"ds_write_b128 v47, v[60:63] offset:{LC}")
    A("v_lshlrev_b32 v57, 2, v0")
    A(f"ds_write_b32 v57, v48 offset:{BINCNT}")
    A(f"ds_write_b32 v57, v48 offset:{BINCNT+128}")
    A(f"ds_write_b32 v57, v48 offset:{GINFO}")
    A("s_mov_b64 exec, s[50:51]")
    A(f"v_lshrrev_b32 v{vC}, 1, v0")
    A(f"s_cmp_eq_u32 s{sSTEP}, 1")
    A("s_cbranch_scc0 V_CF")
    A(f"v_mov_b32 v{vC}, s{sC0}")
    A.label("V_CF")
    A(f"v_lshlrev_b32 v{vTb}, 3, v{vC}")
    A("s_lshl_b32 s48, s2, 11")
    A(f"s_add_u32 s48, s48, {WS_CS64:#x}")
    A("s_mov_b32 s52, 0")
    A("v_mov_b32 v103, 0")
    A.label("V_POLL")
    A(f"buffer_load_dwordx2 v[{vG}:{vG+1}], v{vTb}, s[{sWS}:{sWS+3}], s48 offen sc1")
    A("global_load_dword v102, v103, s[82:83] sc1")
    A("s_waitcnt vmcnt(0) lgkmcnt(0)")
    A("s_cmp_lg_u32 s62, 0")
    A("s_cbranch_scc1 V_FLAGGED")
    A("s_mov_b32 s62, 1")
    A("s_barrier")
    A("s_cmp_lg_u32 s3, 7")
    A("s_cbranch_scc1 V_FLAGGED")
    A(f"v_mov_b32 v{vTa}, s{sNONCE}")
    A("s_lshl_b32 s49, s2, 2")
    A(f"s_add_u32 s49, s49, {WS_FLAGA:#x}")
    A("s_mov_b64 exec, 1")
    A(f"buffer_store_dword v{vTa}, v103, s[{sWS}:{sWS+3}], s49 offen sc1")
    A("s_mov_b64 exec, -1")
    A.label("V_FLAGGED")
    A(f"v_readfirstlane_b32 s{sNONCE}, v102")
    A.nop(4)
    A(f"v_cmp_ne_u32 vcc, s{sNONCE}, v{vG+1}")
    A(f"s_cmp_eq_u32 s{sNONCE}, 0")
    A("s_cbranch_scc1 V_POLL2")
    A("s_cbranch_vccz V_POLLED")
    A.label("V_POLL2")
    A("s_add_u32 s52, s52, 1")
    A("s_cmp_gt_u32 s52, 0x4000")
    A("s_cbranch_scc0 V_POLL")
    A.label("V_POLLED")
    T.mark()
    A(f"v_and_b32 v{vTa}, 0xffff, v{vG}")
    A(f"v_lshrrev_b32 v{vCn}, 16, v{vG}")
    A(f"v_and_b32 v{vTb}, 1, v0")
    A(f"s_cmp_eq_u32 s{sSTEP}, 1")
    A("s_cbranch_scc0 V_FAST")
    A("s_barrier")
    A("v_lshrrev_b32 v57, 1, v0")
    A("v_lshlrev_b32 v57, 3, v57")
    A(f"v_add_u32 v{vTa}, v{vTa}, v57")
    A(f"v_sub_u32 v{vCn}, v{vCn}, v57")
    A(f"v_max_i32 v{vCn}, 0, v{vCn}")
    A(f"v_min_u32 v{vCn}, 8, v{vCn}")
    A("s_branch V_GO")
    A.label("V_FAST")
    A(f"v_cmp_lt_u32 vcc, 24, v{vCn}")
    A("s_cbranch_vccz V_GO")
    A("v_mov_b32 v57, 1")
    A("v_mov_b32 v60, 0")
    A(f"ds_write_b32 v60, v57 offset:{OVF}")
    A.label("V_GO")
    A(f"s_movk_i32 s49, {CH}")
    A(f"v_mad_u32_u24 v57, v{vC}, s49, v{vTa}")
    A(f"v_lshl_add_u32 v57, v{vTb}, 2, v57")
    A("v_lshlrev_b32 v57, 3, v57")
    A(f"s_mov_b32 s48, {WS_REC:#x}")
    for it in range(2):
        for h in range(2):
            A(f"buffer_load_dwordx4 v[{R+8*it+4*h}:{R+8*it+4*h+3}], v57, s[{sWS}:{sWS+3}], s48 offen offset:{64*it+16*h} sc1")
    A(f"v_lshlrev_b32 v{vTb}, 2, v{vTb}")
    A(f"v_sub_u32 v{vCn}, v{vCn}, v{vTb}")
    A(f"v_cmp_lt_i32 vcc, 16, v{vCn}")
    A("s_mov_b32 s63, 0")
    A("s_cbranch_vccz V_NO3")
    A("s_mov_b32 s63, 1")
    for h in range(2):
        A(f"buffer_load_dwordx4 v[{R+16+4*h}:{R+16+4*h+3}], v57, s[{sWS}:{sWS+3}], s48 offen offset:{128+16*h} sc1")
    A.label("V_NO3")
    A("s_cmp_lg_u32 s62, 1")
    A("s_cbranch_scc1 V_BN_DONE")
    Xb=160; B0=192; B1=224; accb=[112,12]; ADb=100
    A(f"s_mul_i32 s50, s{sG}, 25")
    A(f"v_add_u32 v60, s50, v{vNU}")
    A("v_min_u32 v60, 97, v60")
    A("v_and_b32 v61, 15, v60")
    A("v_xor_b32 v61, v61, v6")
    A("v_lshlrev_b32 v61, 4, v61")
    A("v_lshl_add_u32 v60, v60, 8, v61")
    A(f"v_add_u32 v60, {XL}, v60")
    for s in range(8): A(f"v_xor_b32 v{48+s}, {32*s}, v60")
    for s in range(8): A(f"ds_read_b128 v[{Xb+4*s}:{Xb+4*s+3}], v{48+s}")
    A(f"v_add_u32 v60, s{sSO0}, v{vTRB}")
    A(f"v_mov_b32 v{ADb}, v60")
    A(f"v_add_u32 v{ADb+1}, 8, v60")
    A(f"v_xor_b32 v{ADb+2}, 16, v60")
    A(f"v_add_u32 v{ADb+3}, 8, v{ADb+2}")
    def wrb(buf,k):
        for s in range(8):
            for jj in range(2):
                A(f"ds_read_b64_tr_b16 v[{buf+4*s+2*jj}:{buf+4*s+2*jj+1}], v{ADb+k} offset:{s*8192+jj*2048}")
    bb=[B0,B1]
    A("s_waitcnt lgkmcnt(0)")
    wrb(B0,0)
    A(f"s_mov_b32 s51, {f2u(SCALE):#x}")
    def bn_finish(k):
        a=accb[k&1]
        A(f"v_lshlrev_b32 v{8+k}, 16, v{8+k}")
        for r in range(16):
            A(f"v_add_f32 v{a+r}, v{a+r}, v{8+k}")
            A(f"v_mul_f32 v{a+r}, s51, v{a+r}")
        for i in range(8): A(f"v_cvt_pk_bf16_f32 v{vBn+8*k+i}, v{a+2*i}, v{a+2*i+1}")
    for k in range(4):
        A("s_waitcnt lgkmcnt(0)")
        if k<3: wrb(bb[(k+1)&1],k+1)
        for s in range(8):
            A(mfma(accb[k&1],Xb+4*s,bb[k&1]+4*s,None if s==0 else accb[k&1]))
        if k>0: bn_finish(k-1)
    A.nop(16)
    bn_finish(3)
    for i in range(64): A(f"v_mov_b32 v{vS+i}, 0")
    A(f"v_add_u32 v60, s{sM0}, v{vAgB}")
    for q in range(4): A(f"v_xor_b32 v{vAgA+q}, {32*q}, v60")
    A.label("V_BN_DONE")
    A(f"v_mov_b32 v{vOne}, 1")
    A("s_waitcnt vmcnt(0)")
    def passA(q):
        it,k=q//4,q%4
        w0,w1=R+2*q,R+2*q+1
        A(f"v_cmp_lt_i32 vcc, {8*it+k}, v{vCn}")
        A("s_mov_b64 exec, vcc")
        A(f"v_lshlrev_b32_sdwa v{48+2*(q&3)}, 2, v{w1} {SDWA}BYTE_3")
        A(f"v_lshlrev_b32_sdwa v{49+2*(q&3)}, 2, v{w0} {SDWA}BYTE_3")
        A(f"ds_add_rtn_u32 v{RK+q}, v{48+2*(q&3)}, v{vOne} offset:{BINCNT}")
        A(f"ds_add_u32 v{49+2*(q&3)}, v{vOne} offset:{NODECNT}")
    for q in range(8): passA(q)
    A("s_mov_b64 exec, -1")
    A("s_cmp_eq_u32 s63, 0")
    A("s_cbranch_scc1 V_NO3B")
    for q in range(8,12): passA(q)
    A("s_mov_b64 exec, -1")
    A.label("V_NO3B")
    A("s_waitcnt lgkmcnt(0)")
    A("s_barrier")
    T.mark()
    A("s_cmp_lg_u32 s3, 0")
    A("s_cbranch_scc1 V_NOPFX")
    A("v_lshlrev_b32 v60, 2, v1")
    A(f"ds_read_b32 v61, v60 offset:{BINCNT}")
    A("s_waitcnt lgkmcnt(0)")
    A("v_mov_b32 v62, v61")
    for sh in (1,2,4,8):
        A.nop(2)
        A(f"v_add_u32_dpp v62, v62, v62 row_shr:{sh} row_mask:0xf bank_mask:0xf bound_ctrl:0")
    A.nop(1)
    for g in range(4): A(f"v_readlane_b32 s{50+g}, v62, {16*g+15}")
    A.nop(4)
    A("s_add_u32 s58, s50, s51\ns_add_u32 s58, s58, s52\ns_add_u32 s58, s58, s53")
    for g in range(4):
        A(f"s_add_u32 s{50+g}, s{50+g}, 31")
        A(f"s_lshr_b32 s{50+g}, s{50+g}, 5")
    A("s_mov_b32 s54, 0\ns_mov_b32 s55, s50\ns_add_u32 s56, s55, s51\ns_add_u32 s57, s56, s52")
    A("v_sub_u32 v62, v62, v61")
    A("v_mov_b32 v63, 0")
    for g in range(1,4):
        A(f"s_lshl_b32 s59, s{54+g}, 5")
        A("v_mov_b32 v48, s59")
        A(f"v_cmp_le_u32 vcc, {16*g}, v1")
        A.nop(2)
        A("v_cndmask_b32 v63, v63, v48, vcc")
    A("v_add_u32 v62, v62, v63")
    A(f"ds_write_b32 v60, v62 offset:{BINBASE}")
    A("s_mov_b64 exec, 1")
    for i in range(8): A(f"v_mov_b32 v{48+i}, s{50+i}")
    A("v_mov_b32 v60, 0")
    A(f"ds_write_b128 v60, v[48:51] offset:{GINFO}")
    A(f"ds_write_b128 v60, v[52:55] offset:{GINFO+16}")
    A(f"s_cmp_gt_u32 s58, {MAXTOT}")
    A("s_cbranch_scc0 V_NOOVF")
    A("v_mov_b32 v61, 1")
    A(f"ds_write_b32 v60, v61 offset:{OVF}")
    A.label("V_NOOVF")
    A("s_mov_b64 exec, -1")
    A.label("V_NOPFX")
    A("s_waitcnt lgkmcnt(0)")
    A("s_barrier")
    A(f"s_lshl_b32 s50, s{sG}, 2")
    A("v_mov_b32 v60, s50")
    A("v_mov_b32 v48, 0")
    A(f"ds_read_b32 v61, v48 offset:{OVF}")
    A(f"ds_read_b32 v62, v60 offset:{GINFO}")
    A(f"ds_read_b32 v63, v60 offset:{GINFO+16}")
    BBs=160
    for q in range(8):
        A(f"v_lshlrev_b32_sdwa v{48+q}, 2, v{R+2*q+1} {SDWA}BYTE_3")
        A(f"ds_read_b32 v{BBs+q}, v{48+q} offset:{BINBASE}")
    A("s_waitcnt lgkmcnt(8)")
    A("v_readfirstlane_b32 s50, v61")
    A(f"v_readfirstlane_b32 s{sCNT}, v62")
    A("v_readfirstlane_b32 s51, v63")
    A.nop(4)
    A("s_cmp_eq_u32 s50, 0")
    A("s_cbranch_scc1 V_FIT")
    A(f"s_cmp_eq_u32 s{sSTEP}, 1")
    A("s_cbranch_scc1 V_FIT")
    A(f"s_mov_b32 s{sSTEP}, 1")
    A(f"s_mov_b32 s{sC0}, 0")
    A("s_mov_b32 s62, 3")
    A("s_waitcnt lgkmcnt(0)")
    A("s_barrier")
    A("v_mov_b32 v48, 0")
    A("v_lshlrev_b32 v47, 2, v0")
    A("v_cmp_gt_u32 vcc, 128, v0")
    A("s_and_saveexec_b64 s[50:51], vcc")
    A(f"ds_write_b32 v47, v48 offset:{NODECNT}")
    A("s_mov_b64 exec, s[50:51]")
    A("s_branch V_BATCH")
    A.label("V_FIT")
    A(f"s_min_u32 s{sCNT}, s{sCNT}, 66")
    A("s_min_u32 s51, s51, 66")
    A("s_waitcnt lgkmcnt(0)")
    def passB(q,bb_):
        it,k=q//4,q%4
        w0,w1=R+2*q,R+2*q+1
        t=48+4*(q&1)
        A(f"v_cmp_lt_i32 vcc, {8*it+k}, v{vCn}")
        A("s_mov_b64 exec, vcc")
        A(f"v_add_lshl_u32 v{t}, v{bb_}, v{RK+q}, 2")
        A(f"v_bfi_b32 v{t+1}, s{sMASK}, v{w1}, v{w0}")
        A(f"v_bfe_u32 v{t+2}, v{w0}, 24, 5")
        A(f"v_mul_u32_u24 v{t+2}, {IDS}, v{t+2}")
        A(f"v_and_b32 v{t+3}, s{sMASK}, v{w0}")
        if 'nogather' in F.ABL: A(f"v_mov_b32 v{t+3}, 0")
        A(f"ds_write_b32 v{t}, v{t+3} offset:{LA}")
        A(f"ds_write_b32 v{t}, v{t+1} offset:{LB}")
        A(f"ds_write_b32 v{t}, v{t+2} offset:{LC}")
    for q in range(8): passB(q,BBs+q)
    A("s_mov_b64 exec, -1")
    A("s_cmp_eq_u32 s63, 0")
    A("s_cbranch_scc1 V_NO3C")
    for q in range(8,12):
        A(f"v_lshlrev_b32_sdwa v{56+(q&1)}, 2, v{R+2*q+1} {SDWA}BYTE_3")
        A(f"ds_read_b32 v{BBs+q}, v{56+(q&1)} offset:{BINBASE}")
    A("s_waitcnt lgkmcnt(0)")
    for q in range(8,12): passB(q,BBs+q)
    A("s_mov_b64 exec, -1")
    A.label("V_NO3C")
    A("s_cmp_eq_u32 s62, 2")
    A("s_cbranch_scc1 V_AOK")
    A("s_mov_b32 s62, 2")
    A("v_lshlrev_b32 v60, 2, v1")
    A("s_and_b32 s52, s3, 3")
    A("s_lshl_b32 s52, s52, 8")
    A(f"s_add_u32 s52, s52, {WS_FLAGA:#x}")
    A("s_mov_b32 s53, 0")
    A.label("V_APOLL")
    A(f"buffer_load_dword v61, v60, s[{sWS}:{sWS+3}], s52 offen sc1")
    A("s_waitcnt vmcnt(0)")
    A(f"v_cmp_ne_u32 vcc, s{sNONCE}, v61")
    A("s_cbranch_vccz V_APOLLED")
    A("s_add_u32 s53, s53, 1")
    A("s_cmp_gt_u32 s53, 0x4000")
    A("s_cbranch_scc0 V_APOLL")
    A.label("V_APOLLED")
    A("s_waitcnt lgkmcnt(0)")
    A("s_barrier")
    A(f"s_lshl_b32 s52, s{sHW}, 12")
    A(f"s_add_u32 s52, s52, {WS_WCF2:#x}")
    for k in range(4):
        A(f"buffer_load_dwordx4 v[{vWc+4*k}:{vWc+4*k+3}], v4, s[{sWS}:{sWS+3}], s52 offen offset:{k*1024} sc1")
    A("s_branch V_LISTS")
    A.label("V_AOK")
    A("s_waitcnt lgkmcnt(0)")
    A("s_barrier")
    A.label("V_LISTS")
    T.mark()
    A(f"s_cmp_eq_u32 s{sCNT}, 0")
    A("s_cbranch_scc1 V_LOOP_DONE")
    L=Loop(A)
    A("s_lshl_b32 s51, s51, 7")
    A(f"v_add_u32 v{vLAa}, s51, v{vLAo}")
    A(f"v_add_u32 v{vLBa}, s51, v{vLBo}")
    A(f"v_add_u32 v{vLCa}, s51, v{vLCo}")
    L.ds(f"ds_read_b128 v[{vDA}:{vDA+3}], v{vLAa}","LA")
    L.ds(f"ds_read_b32 v{vLBv}, v{vLBa}","LB")
    L.wait("LB"); da_add(A); lb_decode(A)
    for i in range(4): dma(A,0,sSO0,i)
    e_load(A)
    for i in range(4): dma(A,1,sSO1,i)
    L.ds(f"ds_read_b128 v[{vDA}:{vDA+3}], v{vLAa} offset:128","LA")
    pt_reads(L)
    L.ds(f"ds_read_b32 v{vLBv}, v{vLBa} offset:128","LB")
    L.wait("LB"); da_add(A); lb_decode(A)
    L.ds(f"ds_read_b128 v[{vPTa}:{vPTa+3}], v{vLCa}","LC")
    A(f"v_add_u32 v{vLAa}, 256, v{vLAa}")
    A(f"v_add_u32 v{vLBa}, 256, v{vLBa}")
    A(f"v_add_u32 v{vLCa}, 128, v{vLCa}")
    for i in range(4):
        A(f"v_mov_b32 v{vH+4+i}, 0")
        A(f"v_mov_b32 v{vPT+4+i}, 0")
    L.wait("LC"); pta_add(A)
    A("s_waitcnt vmcnt(4)")
    ag_reads(L,0); e_mov(A); L.wait("Ag")
    for i in range(4): dma(A,0,sSO0,i)
    e_load(A)
    for m in zq(0): A(m)
    A.nop(16)
    T.mark()
    A(".p2align 6")
    A.label("V_LOOP")
    L=Loop(A)
    for k in range(4): nstep(A,L,k)
    A(f"s_sub_u32 s{sCNT}, s{sCNT}, 1")
    A(f"s_cmp_lg_u32 s{sCNT}, 0")
    A("s_cbranch_scc1 V_LOOP")
    A.nop(2)
    A(mfma(vS+48,vH+4,vPT+4,vS+48))
    A.label("V_LOOP_DONE")
    T.mark()
    A("s_waitcnt vmcnt(0) lgkmcnt(0)")
    A(f"s_add_u32 s{sC0}, s{sC0}, s{sSTEP}")
    A(f"s_cmp_lt_u32 s{sC0}, 256")
    A("s_cbranch_scc0 V_EPI")
    A("s_barrier")
    A("s_branch V_BATCH")
    A.label("V_EPI")
    A("s_and_b32 s50, s3, 3")
    A("s_lshl_b32 s51, s50, 14")
    A(f"s_add_u32 s51, s51, {WS_W2F2:#x}")
    for i in range(16):
        if i%4==0: A(f"s_add_u32 s52, s51, {(i//4)*4096}")
        A(f"buffer_load_dwordx4 v[{64+4*i}:{67+4*i}], v4, s[{sWS}:{sWS+3}], s52 offen offset:{(i%4)*1024} sc1")
    srd(A,sSD,78,79,256)
    A("v_lshlrev_b32 v5, 3, v6")
    A("s_lshl_b32 s52, s50, 6")
    for g4 in range(4):
        A(f"buffer_load_dwordx2 v[{32+2*g4}:{33+2*g4}], v5, s[{sSD}:{sSD+3}], s52 offen offset:{g4*16}")
    A(f"s_mov_b32 s53, {f2u(ISCALE):#x}")
    A(f"s_lshl_b32 s54, s{sG}, 3")
    A(f"s_lshl_b32 s55, s{sHW}, 2")
    A("s_add_u32 s54, s54, s55")
    A("s_lshl_b32 s54, s54, 11")
    A(f"s_add_u32 s54, s54, {STG}")
    A("v_add_u32 v46, s54, v4")
    A.nop(8)
    for k in range(4):
        for r in range(16): A(f"v_mul_f32 v{vS+16*k+r}, s53, v{vS+16*k+r}")
        for i in range(8): A(f"v_cvt_pk_bf16_f32 v{128+8*k+i}, v{vS+16*k+2*i}, v{vS+16*k+2*i+1}")
    A("s_barrier")
    for k in range(4):
        A(f"ds_write_b128 v46, v[{128+8*k}:{128+8*k+3}] offset:{k*2048}")
        A(f"ds_write_b128 v46, v[{128+8*k+4}:{128+8*k+7}] offset:{k*2048+1024}")
    A("s_waitcnt lgkmcnt(0)")
    A("s_barrier")
    T.mark()
    A("s_lshr_b32 s55, s3, 2")
    for gi in range(2):
        A("s_lshl_b32 s56, s55, 1")
        A(f"s_add_u32 s56, s56, {gi}")
        A("s_lshl_b32 s57, s56, 14")
        A(f"s_add_u32 s57, s57, {STG}")
        A(f"v_add_u32 v{46+gi}, s57, v4")
        for i in range(16):
            A(f"ds_read_b128 v[{128+64*gi+4*i}:{131+64*gi+4*i}], v{46+gi} offset:{i*1024}")
        A("s_lshl_b32 s58, s56, 7")
        A(f"v_lshlrev_b32 v{26+gi}, 2, v7")
        A(f"v_add_u32 v{26+gi}, s58, v{26+gi}")
        A(f"ds_read_b32 v{24+gi}, v{26+gi} offset:{NODECNT}")
    A("s_waitcnt vmcnt(0)")
    for g4 in range(4):
        for h in range(2):
            A(f"v_lshlrev_b32 v{8+4*g4+2*h}, 16, v{32+2*g4+h}")
            A(f"v_and_b32 v{8+4*g4+2*h+1}, 0xffff0000, v{32+2*g4+h}")
    A(f"s_add_u32 s60, s{sN0}, {NPW}")
    A(f"s_min_u32 s60, s60, {N}")
    A("s_waitcnt lgkmcnt(0)")
    accs=[32,48]
    for i in range(16):
        for gi in range(2):
            A(mfma(accs[gi],64+4*i,128+64*gi+4*i,None if i==0 else accs[gi]))
    A.nop(16)
    for gi in range(2):
        acc2=accs[gi]
        A("s_lshl_b32 s56, s55, 1")
        A(f"s_add_u32 s56, s56, {gi}")
        A("s_mul_i32 s58, s56, 25")
        A(f"v_cvt_f32_u32 v{24+gi}, v{24+gi}")
        for r in range(16): A(f"v_fma_f32 v{acc2+r}, v{24+gi}, v{8+r}, v{acc2+r}")
        for i in range(8): A(f"v_cvt_pk_bf16_f32 v{64+8*gi+i}, v{acc2+2*i}, v{acc2+2*i+1}")
        A("v_add_u32 v27, s58, v7")
        A(f"v_add_u32 v27, s{sN0}, v27")
        A("v_cmp_gt_u32 vcc, s60, v27")
        A("v_cmp_gt_u32 s[58:59], 25, v7")
        A.nop(2)
        A("s_and_b64 vcc, vcc, s[58:59]")
        A("s_and_saveexec_b64 s[58:59], vcc")
        A(f"s_cbranch_execz V_ST{gi}")
        A("v_lshlrev_b32 v27, 8, v27")
        A("v_add_u32 v27, v27, v5")
        for g4 in range(4):
            A(f"buffer_store_dwordx2 v[{64+8*gi+2*g4}:{65+8*gi+2*g4}], v27, s[{sOUT}:{sOUT+3}], s52 offen offset:{g4*16}")
        A.label(f"V_ST{gi}")
        A("s_mov_b64 exec, s[58:59]")
    if diag:
        A("s_waitcnt vmcnt(0)")
        T.mark()
        A("s_load_dwordx2 s[60:61], s[0:1], 80")
        A("s_waitcnt lgkmcnt(0)")
        T.dump(1,60,61)
    A.label("V_END")
    A("s_endpgm")
    A(".p2align 8")
    A.label("V_TAB")
    w=const_table()
    for i in range(0,len(w),8):
        A(".long "+", ".join(f"{x:#x}" for x in w[i:i+8]))
    return name, A.text(), kd(name,256,102), LDS_TOTAL
```

```python
import sys
from common import *
from k1 import gen_k1
HEADER=open("cdna_kernels/"+KNAME+".s.ref").read().split("; Override launch")[0]
def build(parts,path,single=False):
    out=[HEADER.rstrip()]
    for (name,text,kdesc,lds,grid,block) in parts:
        if single: out.append(f"; @launch grid=({grid},1,1) block=({block},1,1) lds={lds}")
        else: out.append(f"; @launch kernel={name} grid=({grid},1,1) block=({block},1,1) lds={lds}")
    out.append('.amdgcn_target "amdgcn-amd-amdhsa--gfx950"')
    out.append(".text")
    for p in parts: out.append(p[1])
    out.append('.section .rodata,"a"')
    for p in parts: out.append(p[2])
    text="\n".join(out)+"\n"
    import re
    for ln in text.split("\n"):
        m=re.search(r"offset:(\d+)",ln)
        if not m: continue
        o=int(m.group(1)); t=ln.strip()
        if t.startswith("buffer_"): assert o<=4095,ln
        elif t.startswith("global_"): assert o<=4095,ln
        elif t.startswith("ds_"): assert o<=65535,ln
    open(path,"w").write(text)
if __name__=="__main__":
    which=sys.argv[1] if len(sys.argv)>1 else "all"
    path=sys.argv[2] if len(sys.argv)>2 else "k.s"
    diag="diag" in sys.argv
    parts=[]
    if which=="v3":
        import fused, v3
        for a in sys.argv:
            if a.startswith("abl="): fused.ABL.update(a[4:].split(","))
        n,t,k,l=v3.gen(diag); parts.append((n,t,k,l,256,512))
        build(parts,path,single=True); sys.exit(0)
    if which=="fused":
        import fused
        for a in sys.argv:
            if a.startswith("abl="): fused.ABL.update(a[4:].split(","))
        n,t,k,l=fused.gen_fused(diag); parts.append((n,t,k,l,256,512))
        build(parts,path,single=True); sys.exit(0)
    n,t,k,l=gen_k1(diag); parts.append((n,t,k,l,256,512))
    if which!="k1":
        import k2
        from k2 import gen_k2
        for a in sys.argv:
            if a.startswith("abl="): k2.ABL.update(a[4:].split(","))
        n,t,k,l=gen_k2(diag); parts.append((n,t,k,l,256,512))
    build(parts,path)
```
